```python
import torch

def _softmax(x, axis=-1):
    return torch.softmax(x, dim=axis)
def _gelu(x):
    return torch.nn.functional.gelu(x, approximate="tanh")
def _silu(x):
    return torch.nn.functional.silu(x)
def _sigmoid(x):
    return torch.sigmoid(x)
def _layernorm(x, axis=-1, eps=1e-5):
    m = x.mean(dim=axis, keepdim=True)
    v = x.var(dim=axis, keepdim=True, unbiased=False)
    return (x - m) / torch.sqrt(v + eps)
def _scatter_add(tgt, idx, src, axis=0):
    return tgt.clone().index_add_(axis, idx, src)
def _segment_sum(src, seg, n):
    out = torch.zeros((n,) + src.shape[1:], dtype=src.dtype)
    return out.index_add_(0, seg, src)
def _pad(x, pw):
    flat = tuple(v for pair in reversed(pw) for v in pair)
    return torch.nn.functional.pad(x, flat)

kernel_name = 'concat_heads__grouped_kv_mqa__spectral_gfnet__prompt'

def setup_inputs():

    _w = (lambda a: (lambda t: t.to(torch.bfloat16) if t.is_floating_point() else t)(torch.as_tensor(a)))
    def _A_setup():
        B, S, D, H = 1, 2048, 512, 32
        Dh = D // H
        return {
            "x": _w((lambda *s: torch.randn(*s, dtype=torch.bfloat16) * 0.05)(B, S, D)),
            "wq": _w((lambda *s: torch.randn(*s, dtype=torch.bfloat16) * 0.8)(D, H * Dh)),
            "wk": _w((lambda *s: torch.randn(*s, dtype=torch.bfloat16) * 0.8)(D, Dh)),
            "wv": _w((lambda *s: torch.randn(*s, dtype=torch.bfloat16) * 0.05)(D, Dh)),
            "wo": _w((lambda *s: torch.randn(*s, dtype=torch.bfloat16) * 0.05)(H * Dh, D)),
        }
    _A_in = _A_setup()

    def _B_setup():
        B, S, D = 1, 2048, 512
        Df = D // 2 + 1
        return {
            "x": _w((lambda *s: torch.randn(*s, dtype=torch.bfloat16) * 0.05)(B, S, D)),
            "w_r": _w((lambda *s: torch.randn(*s, dtype=torch.bfloat16) * 0.4)(S, Df) * 0.02),
            "w_i": _w((lambda *s: torch.randn(*s, dtype=torch.bfloat16) * 0.4)(S, Df) * 0.02),
        }
    _B_in = _B_setup()

    return {
        "A_x": _A_in["x"],
        "A_wq": _A_in["wq"],
        "A_wk": _A_in["wk"],
        "A_wv": _A_in["wv"],
        "A_wo": _A_in["wo"],
        "B_x": _B_in["x"],
        "B_w_r": _B_in["w_r"],
        "B_w_i": _B_in["w_i"],
    }

def reference(A_x, A_wq, A_wk, A_wv, A_wo, B_x, B_w_r, B_w_i):
    def _A_ref(x, wq, wk, wv, wo):
        B, S, D = x.shape
        H = 32
        Dh = D // H
        q = (lambda x, *d: x.permute(*d))((x @ wq).reshape(B, S, H, Dh), 0, 2, 1, 3)
        k = x @ wk
        v = x @ wv
        scores = torch.einsum("bhqd,bkd->bhqk", q, k) * (Dh ** -0.5)
        p = _softmax(scores, axis=-1)
        o = torch.einsum("bhqk,bkd->bhqd", p, v)
        return (lambda x, *d: x.permute(*d))(o, 0, 2, 1, 3).reshape(B, S, H * Dh) @ wo

    def _B_ref(x, w_r, w_i):
        B, S, D = x.shape
        X = (lambda x, axes=(-2,-1): torch.fft.rfft2(x.float(), dim=axes))(x, axes=(-2, -1))
        W = w_r + 1j * w_i
        X = X * W
        y = (lambda x, s, axes=(-2,-1): torch.fft.irfft2(x, s=s, dim=axes).to(torch.bfloat16))(X, (S, D), axes=(-2, -1))
        return y

    a = _A_ref(A_x, A_wq, A_wk, A_wv, A_wo)
    b = _B_ref(B_x, B_w_r, B_w_i)
    return torch.concatenate([a, b], axis=-1)
```

```python
MB=1<<20
WS_Q=0; WS_KF=2*MB; WS_VF=2*MB+65536; WS_YT=3*MB; WS_O=5*MB; WS_ZT=7*MB; WS_G=9*MB; WS_TB=10*MB
KA={'xa':0,'wq':8,'wk':16,'wv':24,'wo':32,'xb':40,'wr':48,'wi':56,'out':64,'dbg':72,'ws':80}
class E:
    def __init__(s): s.l=[]
    def __call__(s,x):
        for y in x.split('\n'):
            y=y.strip()
            if y: s.l.append(y if y.endswith(':') else '  '+y)
    def text(s): return '\n'.join(s.l)+'\n'
def vr(a,n): return f"v[{a}:{a+n-1}]" if n>1 else f"v{a}"
def sr(a,n): return f"s[{a}:{a+n-1}]"
def fhex(x):
    import struct
    return '0x%08x'%struct.unpack('<I',struct.pack('<f',x))[0]
def srd(e,d,b,off,size):
    if off:
        e(f"s_add_u32 s{d}, s{b}, {off}\ns_addc_u32 s{d+1}, s{b+1}, 0")
    else:
        e(f"s_mov_b32 s{d}, s{b}\ns_mov_b32 s{d+1}, s{b+1}")
    e(f"s_mov_b32 s{d+2}, {size}\ns_mov_b32 s{d+3}, 0x00020000")
def header(e,name):
    e(f".p2align 8\n.globl {name}\n.type {name},@function\n{name}:")
def desc(name,vg):
    return f""".amdhsa_kernel {name}
  .amdhsa_next_free_vgpr {vg}
  .amdhsa_next_free_sgpr 96
  .amdhsa_accum_offset {vg}
  .amdhsa_group_segment_fixed_size 0
  .amdhsa_kernarg_size 88
  .amdhsa_user_sgpr_count 2
  .amdhsa_user_sgpr_kernarg_segment_ptr 1
  .amdhsa_system_sgpr_workgroup_id_x 1
.end_amdhsa_kernel
"""
def swap23(e,d,s,t):
    e(f"""v_lshrrev_b32 v{t}, 1, v{s}
    v_xor_b32 v{t}, v{t}, v{s}
    v_and_b32 v{t}, 4, v{t}
    v_lshl_or_b32 v{d}, v{t}, 1, v{t}
    v_xor_b32 v{d}, v{d}, v{s}""")
MF32="v_mfma_f32_32x32x16_bf16"; MF16="v_mfma_f32_16x16x32_bf16"
```

```python
from gen_common import *
P0=128; ACC=64; SF=32
vL=1; vH=2; vN=3; vPO=4; vSO=5; vT0=6; vT1=7; vKV=8; vST=9; vA=10; vB=11; vC=12; vD=13
sW=3
SRD_P=8; SRD_S=12; SRD_O=16; SRD_X=20; SRD_Y=24
def prolog_ids(e):
    e(f"""v_lshrrev_b32 v{vA}, 6, v0
    v_and_b32 v{vL}, 63, v0
    v_readfirstlane_b32 s{sW}, v{vA}
    v_lshrrev_b32 v{vH}, 5, v{vL}
    v_and_b32 v{vN}, 31, v{vL}""")
def s_dma_voff(e,rowstride_log2):
    e(f"""v_lshrrev_b32 v{vA}, 2, v{vL}
    v_and_b32 v{vA}, 4, v{vA}
    v_xor_b32 v{vA}, v{vA}, v{vL}
    v_and_b32 v{vA}, 7, v{vA}
    v_lshlrev_b32 v{vA}, 4, v{vA}
    v_lshrrev_b32 v{vB}, 3, v{vL}
    v_lshl_or_b32 v{vSO}, v{vB}, {rowstride_log2}, v{vA}""")
def tr_addrs(e,swap):
    e(f"""v_and_b32 v{vA}, 3, v{vL}""")
    if swap: e(f"""v_lshrrev_b32 v{vB}, 1, v{vA}
    v_and_b32 v{vA}, 1, v{vA}
    v_lshl_or_b32 v{vA}, v{vA}, 1, v{vB}""")
    e(f"""v_lshlrev_b32 v{vA}, 3, v{vA}
    v_bfe_u32 v{vB}, v{vL}, 2, 2
    v_lshl_or_b32 v{vKV}, v{vB}, 5, v{vA}
    v_lshl_or_b32 v{vKV}, v{vH}, 8, v{vKV}
    v_add_u32 v{vKV}, 0x10000, v{vKV}
    v_lshl_or_b32 v{vA}, v{vB}, 7, v{vA}
    v_lshl_or_b32 v{vA}, v{vH}, 10, v{vA}
    v_bfe_u32 v{vB}, v{vL}, 4, 1
    v_lshl_or_b32 v{vA}, v{vB}, 5, v{vA}
    v_bfe_u32 v{vB}, v{vL}, 3, 1
    v_lshl_or_b32 v{vT0}, v{vB}, 6, v{vA}
    v_xor_b32 v{vT1}, 64, v{vT0}""")
def issue_loads(e,rowstride,pfrag,kv,sS,sP):
    e(f"s_lshl_b32 s40, s{sW}, 12\ns_mul_i32 s41, s{sW}, {32*rowstride}\ns_add_u32 s41, s41, s{sS}")
    if kv: e(f"s_lshl_b32 s42, s{sW}, 10\ns_add_u32 s43, s42, 0x10000\nv_lshlrev_b32 v{vA}, 4, v{vL}")
    for c in range(4):
        for i in range(4):
            e(f"s_mov_b32 m0, s40\ns_add_u32 s40, s40, {1024 if i<3 else 16384-3072}")
            e(f"buffer_load_dwordx4 v{vSO}, {sr(SRD_S,4)}, s41 offen lds")
            e(f"s_add_u32 s41, s41, {8*rowstride if i<3 else (128-24)*rowstride}")
        if kv:
            e(f"s_mov_b32 m0, s43\ns_add_u32 s43, s43, 4096")
            e(f"buffer_load_dwordx4 v{vA}, {sr(SRD_X,4)}, s42 offen lds\ns_add_u32 s42, s42, 4096")
        for k in range(8):
            ks=8*c+k
            if pfrag:
                e(f"buffer_load_dwordx4 {vr(P0+4*ks,4)}, v{vPO}, {sr(SRD_P,4)}, s{sP} offen offset:{(ks&3)*1024}")
                if ks&3==3: e(f"s_add_u32 s{sP}, s{sP}, 4096")
            else:
                e(f"buffer_load_dwordx4 {vr(P0+4*ks,4)}, v{vPO}, {sr(SRD_P,4)}, s{sP} offen offset:{ks*32}")
def main_tr(e,p_is_a,kvload,kv):
    per=13 if kvload else 12; pre=per-8; T=4*per
    D=3 if kv else 4; L=D-1; nr=6 if kv else 4; st=12 if kv else 8
    base=28 if kv else 32
    done=[-1]
    def vwait(pos):
        if pos>done[0]:
            e(f"s_waitcnt vmcnt({T-pos-1})"); done[0]=pos
    def reads(ks):
        if ks%8==0:
            vwait(per*(ks//8)+pre-1); e("s_barrier")
        b=base+st*(ks%D)
        for mt in range(2):
            for u in range(2):
                e(f"ds_read_b64_tr_b16 {vr(b+4*mt+2*u,2)}, v{vT0+mt} offset:{ks*2048+u*512}")
        if kv:
            for u in range(2): e(f"ds_read_b64_tr_b16 {vr(b+8+2*u,2)}, v{vKV} offset:{ks*512+u*128}")
    for ks in range(L): reads(ks)
    for ks in range(32):
        ahead=min(L-1,31-ks)
        vwait(per*(ks//8)+pre+ks%8)
        e(f"s_waitcnt lgkmcnt({ahead*nr})")
        b=base+st*(ks%D); p=vr(P0+4*ks,4)
        for mt in range(2):
            a=vr(ACC+16*mt,16); c=a if ks else '0'; s=vr(b+4*mt,4)
            e(f"{MF32} {a}, {p if p_is_a else s}, {s if p_is_a else p}, {c}")
        if kv:
            a=vr(ACC+32,16); c=a if ks else '0'; s=vr(b+8,4)
            e(f"{MF32} {a}, {s if kv=='K' else p}, {p if kv=='K' else s}, {c}")
        if ks+L<32: reads(ks+L)
def store_acc(e,acc,scale,srd_,voff,soff,off,tmp):
    if scale is not None:
        for i in range(16): e(f"v_mul_f32 v{acc+i}, {scale}, v{acc+i}")
    for i in range(8): e(f"v_cvt_pk_bf16_f32 v{tmp+i}, v{acc+2*i}, v{acc+2*i+1}")
    for j in range(2): e(f"buffer_store_dwordx4 {vr(tmp+4*j,4)}, v{voff}, {sr(srd_,4)}, {soff} offen offset:{off+32*j}")
def proj(e,pre,is_q):
    s_dma_voff(e,10); tr_addrs(e,True)
    e(f"""v_lshlrev_b32 v{vA}, 4, v{vH}
    v_lshl_or_b32 v{vPO}, v{vN}, 10, v{vA}
    s_lshl_b32 s6, s4, 2
    s_add_u32 s6, s6, s{sW}
    s_lshl_b32 s44, s6, 15
    s_lshl_b32 s45, s5, 7""")
    issue_loads(e,1024,False,is_q,45,44)
    if is_q:
        e(f"""s_and_b32 s7, s5, 3
        s_cmp_eq_u32 s7, s{sW}
        s_cbranch_scc0 {pre}_plain
        s_cmp_lt_u32 s5, 4
        s_cbranch_scc0 {pre}_v""")
        main_tr(e,False,True,'K')
        e("s_nop 7\ns_nop 7")
        for i in range(4): e(f"v_cvt_pk_bf16_f32 v{16+i}, v{ACC+32+2*i}, v{ACC+33+2*i}")
        e(f"""v_lshlrev_b32 v{vA}, 4, v{vL}
        s_lshl_b32 s46, s6, 10
        buffer_store_dwordx4 v[16:19], v{vA}, {sr(SRD_Y,4)}, s46 offen
        s_branch {pre}_epi
        {pre}_v:""")
        main_tr(e,False,True,'V')
        e("s_nop 7\ns_nop 7")
        for i in range(8): e(f"v_cvt_pk_bf16_f32 v{16+i}, v{ACC+32+2*i}, v{ACC+33+2*i}")
        e(f"""v_lshlrev_b32 v{vA}, 4, v{vN}
        v_lshl_or_b32 v{vA}, v{vH}, 8, v{vA}
        v_cmp_gt_u32 vcc, 16, v{vN}
        s_lshl_b32 s46, s6, 10
        s_add_u32 s46, s46, 0x10000
        s_and_saveexec_b64 s[48:49], vcc
        buffer_store_dwordx4 v[16:19], v{vA}, {sr(SRD_Y,4)}, s46 offen
        buffer_store_dwordx4 v[20:23], v{vA}, {sr(SRD_Y,4)}, s46 offen offset:512
        s_mov_b64 exec, s[48:49]
        s_branch {pre}_epi
        {pre}_plain:""")
    main_tr(e,False,is_q,None)
    e(f"{pre}_epi:")
    if is_q:
        e(f"s_add_u32 s44, s44, s45\ns_mov_b32 s47, {fhex(0.25*1.4426950408889634)}\ns_nop 7\ns_nop 3")
        vo=vPO
    else:
        e(f"""s_lshl_b32 s44, s44, 1
        s_add_u32 s44, s44, s45
        v_lshlrev_b32 v{vA}, 4, v{vH}
        v_lshl_or_b32 v{vST}, v{vN}, 11, v{vA}
        s_nop 7\ns_nop 3""")
        vo=vST
    for mt in range(2): store_acc(e,ACC+16*mt,'s47' if is_q else None,SRD_O,vo,'s44',64*mt,32+8*mt)
    e("s_endpgm")
```

```python
from gen_common import *
from gen_gemm import *
def trig8(e,dst,vA0,vS,offs,fn,tmp,neg=None):
    cst={1:'1.0',2:'2.0',4:'4.0'}
    for j,o in enumerate(offs):
        if o==0: e(f"{fn} v{tmp+j}, v{vA0}")
        else:
            if o not in cst: e(f"s_mov_b32 s60, {fhex(float(o))}")
            e(f"v_fma_f32 v{tmp+j}, v{vS}, {cst.get(o,'s60')}, v{vA0}\n{fn} v{tmp+j}, v{tmp+j}")
    e("s_nop 0")
    for i in range(4): e(f"v_cvt_pk_bf16_f32 v{dst+i}, v{tmp+2*i}, v{tmp+2*i+1}")
    if neg is not None:
        for i in range(4): e(f"v_xor_b32 v{neg+i}, 0x80008000, v{dst+i}")
def k1(e):
    header(e,"k1_kernel")
    e(f"""s_cmp_gt_u32 s2, 256
    s_cbranch_scc1 K1_exit
    s_load_dwordx8 s[64:71], s[0:1], 0
    s_load_dwordx2 s[72:73], s[0:1], 40
    s_load_dwordx2 s[78:79], s[0:1], 80""")
    prolog_ids(e)
    e(f"""s_and_b32 s6, s2, 7
    s_lshr_b32 s7, s2, 3
    s_and_b32 s4, s7, 1
    s_lshl_b32 s6, s6, 1
    s_add_u32 s4, s4, s6
    s_bfe_u32 s5, s7, 0x30001
    s_waitcnt lgkmcnt(0)
    s_cmp_eq_u32 s2, 256
    s_cbranch_scc1 K1_tab
    s_cmp_ge_u32 s2, 128
    s_cbranch_scc1 K1_b""")
    srd(e,SRD_P,64,0,2*MB); srd(e,SRD_S,66,0,512*1024); srd(e,SRD_O,78,WS_Q,2*MB); srd(e,SRD_Y,78,WS_KF,131072)
    srd(e,SRD_X,68,0,16384)
    e(f"s_cmp_lt_u32 s5, 4\ns_cbranch_scc1 K1_k\ns_mov_b32 s{SRD_X}, s70\ns_mov_b32 s{SRD_X+1}, s71\nK1_k:")
    proj(e,"K1A",True)
    e("K1_b:")
    srd(e,SRD_P,72,0,2*MB); srd(e,SRD_O,78,WS_YT,2*MB)
    swap23(e,vB,vN,vA)
    e(f"""v_lshlrev_b32 v{vA}, 4, v{vH}
    v_lshl_or_b32 v{vPO}, v{vB}, 15, v{vA}
    s_lshl_b32 s6, s4, 2
    s_add_u32 s6, s6, s{sW}
    s_and_b32 s44, s6, 1
    s_lshl_b32 s44, s44, 20
    s_lshr_b32 s45, s6, 1
    s_lshl_b32 s45, s45, 10
    s_add_u32 s44, s44, s45""")
    for ks in range(16):
        for hf in range(2):
            k=ks+16*hf
            e(f"buffer_load_dwordx4 {vr(P0+4*k,4)}, v{vPO}, {sr(SRD_P,4)}, s44 offen offset:{k*32}")
    for nt in range(2):
        e(f"""s_lshl_b32 s7, s5, 6
        s_add_u32 s7, s7, {32*nt}
        v_add_u32 v{vA}, s7, v{vN}
        v_lshrrev_b32 v{vB}, 1, v{vA}
        v_and_b32 v{vC}, 1, v{vA}
        v_cmp_eq_u32 vcc, 1, v{vA}
        v_mov_b32 v{vD}, 0x100
        v_cvt_f32_u32 v{vC}, v{vC}
        v_cndmask_b32 v{vB}, v{vB}, v{vD}, vcc
        v_mul_f32 v{vC}, 0x3e800000, v{vC}
        v_cndmask_b32 v{16+nt}, v{vC}, 0, vcc
        v_cvt_f32_u32 v{14+nt}, v{vB}
        v_mul_f32 v{14+nt}, {fhex(1/512)}, v{14+nt}
        v_lshlrev_b32 v{vB}, 31, v{vB}
        v_or_b32 v{18+nt}, 1.0, v{vB}""")
    e(f"""s_lshl_b32 s7, s{sW}, 4
    v_lshl_add_u32 v{vA}, v{vH}, 3, s7
    v_cvt_f32_u32 v20, v{vA}
    s_lshl_b32 s7, s{sW}, 11
    v_lshl_add_u32 v{vT1}, v{vL}, 4, s7
    v_lshlrev_b32 v{vT0}, 4, v{vL}""")
    for c in range(4):
        for nt in range(2):
            e(f"v_fma_f32 v21, v{14+nt}, v20, v{16+nt}\nv_fract_f32 v21, v21")
            tb=32+16*nt
            trig8(e,tb+8,21,14+nt,range(8),"v_cos_f32",tb)
            e(f"ds_write_b128 v{vT1}, {vr(tb+8,4)} offset:{c*8192+nt*1024}")
        if c<3: e(f"v_add_f32 v20, {fhex(64.0)}, v20")
    e("s_waitcnt lgkmcnt(0)\ns_barrier")
    D=4;L=3
    def reads(ks):
        for nt in range(2): e(f"ds_read_b128 {vr(32+8*(ks%D)+4*nt,4)}, v{vT0} offset:{ks*2048+nt*1024}")
    for ks in range(L): reads(ks)
    for ks in range(16):
        e(f"s_waitcnt vmcnt({30-2*ks}) lgkmcnt({2*min(L-1,15-ks)})")
        for hf in range(2):
            for nt in range(2):
                a=vr(ACC+16*nt+32*hf,16)
                e(f"{MF32} {a}, {vr(P0+4*(ks+16*hf),4)}, {vr(32+8*(ks%D)+4*nt,4)}, {a if ks else 0}")
        if ks+L<16: reads(ks+L)
    e(f"""v_lshlrev_b32 v{vA}, 4, v{vH}
    v_lshl_or_b32 v{vST}, v{vN}, 12, v{vA}
    s_lshl_b32 s44, s5, 18
    s_lshl_b32 s45, s6, 6
    s_add_u32 s44, s44, s45
    s_add_u32 s45, s44, 0x20000
    s_nop 7""")
    for nt in range(2):
        for i in range(16): e(f"v_fma_f32 v{ACC+16*nt+i}, v{ACC+32+16*nt+i}, v{18+nt}, v{ACC+16*nt+i}")
        store_acc(e,ACC+16*nt,None,SRD_O,vST,f"s{44+nt}",0,32+8*nt)
    e("s_endpgm")
    e("K1_tab:")
    srd(e,SRD_O,78,WS_TB,4*26*1024)
    R=14;G=15;A64=16;A32=18;F=20
    e(f"""v_and_b32 v{R}, 15, v{vL}
    v_lshrrev_b32 v{G}, 4, v{vL}
    v_lshlrev_b32 v{vST}, 4, v{vL}
    s_mul_i32 s44, s{sW}, {26*1024}
    s_lshr_b32 s5, s{sW}, 1
    s_and_b32 s4, s{sW}, 1
    s_lshl_b32 s6, s5, 5
    v_and_b32 v{vA}, 12, v{R}
    v_and_b32 v{vB}, 3, v{R}
    v_lshl_add_u32 v{vA}, v{vA}, 1, v{vB}
    v_add_u32 v{vA}, s6, v{vA}
    v_cvt_f32_u32 v{A64}, v{vA}
    v_add_f32 v{A64+1}, 4.0, v{A64}
    v_cvt_f32_u32 v{A32}, v{R}
    v_add_f32 v{A32+1}, {fhex(16.0)}, v{A32}
    v_cvt_f32_u32 v{F}, v{G}""")
    cnt=[0]
    def st(reg):
        e(f"buffer_store_dwordx4 {vr(reg,4)}, v{vST}, {sr(SRD_O,4)}, s44 offen\ns_add_u32 s44, s44, 1024"); cnt[0]+=1
    rb=[64]
    def nreg(n):
        r=rb[0]; rb[0]+=n; return r
    for t in range(2):
        for ks in range(2):
            e(f"""v_mul_f32 v21, {fhex(1/64)}, v{A64+t}
            v_mul_f32 v22, {fhex(8.0)}, v{F}
            v_add_f32 v22, {fhex(32.0*ks)}, v22
            v_mul_f32 v22, v22, v21
            v_fract_f32 v22, v22""")
            c=nreg(12)
            trig8(e,c,22,21,range(8),"v_cos_f32",32); trig8(e,c+4,22,21,range(8),"v_sin_f32",40,c+8)
            st(c);st(c+4);st(c+8)
    for t in range(2):
        e(f"""v_mul_f32 v21, {fhex(1/32)}, v{A32+t}
        v_mul_f32 v22, 4.0, v{F}
        v_mul_f32 v22, v22, v21
        v_fract_f32 v22, v22""")
        c=nreg(12); o=[0,1,2,3,16,17,18,19]
        trig8(e,c,22,21,o,"v_cos_f32",32); trig8(e,c+4,22,21,o,"v_sin_f32",40,c+8)
        st(c);st(c+4);st(c+8)
    for tw in range(2):
        e(f"""s_lshl_b32 s6, s{4 if tw==0 else sW}, 4
        v_lshl_add_u32 v23, v{G}, 2, s6
        v_cvt_f32_u32 v23, v23""")
        for t in range(2):
            e(f"v_mul_f32 v21, {fhex(1/2048)}, v{(A64 if tw==0 else A32)+t}\nv_mul_f32 v22, v21, v23")
            c=nreg(8)
            for i in range(4):
                e(f"v_cos_f32 v{c+i}, v22\nv_sin_f32 v{c+4+i}, v22")
                if i<3: e("v_add_f32 v22, v22, v21")
            if tw==1:
                e("s_nop 0")
                for i in range(8): e(f"v_mul_f32 v{c+i}, {fhex(1/2048)}, v{c+i}")
            e("s_nop 0");st(c);st(c+4)
    assert cnt[0]==26
    e("K1_exit:\ns_endpgm")
def k3(e):
    header(e,"k3_kernel")
    e(f"""s_cmp_ge_u32 s2, 256
    s_cbranch_scc1 K3_exit
    s_load_dwordx2 s[66:67], s[0:1], 32
    s_load_dwordx2 s[76:77], s[0:1], 64
    s_load_dwordx2 s[78:79], s[0:1], 80""")
    prolog_ids(e)
    e(f"""s_and_b32 s6, s2, 7
    s_lshr_b32 s7, s2, 3
    s_waitcnt lgkmcnt(0)""")
    srd(e,SRD_O,76,0,4*MB)
    e(f"""s_cmp_ge_u32 s2, 128
    s_cbranch_scc1 K3_b
    s_and_b32 s4, s7, 1
    s_lshl_b32 s6, s6, 1
    s_add_u32 s4, s4, s6
    s_bfe_u32 s5, s7, 0x30001""")
    srd(e,SRD_P,78,WS_O,2*MB); srd(e,SRD_S,66,0,512*1024)
    proj(e,"K3A",False)
    e(f"""K3_b:
    s_and_b32 s4, s7, 3
    s_lshl_b32 s6, s6, 2
    s_add_u32 s4, s4, s6
    s_bfe_u32 s5, s7, 0x20002
    s_lshl_b32 s5, s5, 2
    s_add_u32 s5, s5, s{sW}""")
    srd(e,SRD_P,78,WS_G,512*1024); srd(e,SRD_S,78,WS_ZT,2*MB)
    s_dma_voff(e,12); tr_addrs(e,False)
    e(f"""v_lshlrev_b32 v{vPO}, 4, v{vL}
    s_lshl_b32 s44, s5, 15
    s_lshl_b32 s45, s4, 7""")
    issue_loads(e,4096,True,False,45,44)
    main_tr(e,True,False,None)
    e(f"""v_lshlrev_b32 v{vA}, 4, v{vH}
    v_lshl_or_b32 v{vST}, v{vN}, 16, v{vA}
    s_lshl_b32 s44, s4, 11
    s_lshl_b32 s45, s5, 6
    s_add_u32 s44, s44, s45
    s_add_u32 s44, s44, 1024
    s_add_u32 s45, s44, {2*MB}
    s_nop 7""")
    for nt in range(2): store_acc(e,ACC+16*nt,None,SRD_O,vST,f"s{44+nt}",0,32+8*nt)
    e("K3_exit:\ns_endpgm")
```

```python
from gen_common import *
L_V=65536; L_ONE=131072; L_E1=135168; L_E2=145408; L_END=154624
def attn(e):
    Q=4; VA=8; KA=9; VS=10; S=[16,32]; O=48; P=64; KB=[72,76]; VB=[80,88]
    SQ=8; SK=12; SO=16
    srd(e,SQ,78,WS_Q,2*MB); srd(e,SK,78,WS_KF,131072); srd(e,SO,78,WS_O,2*MB)
    e(f"""v_lshlrev_b32 v11, 4, v2
    v_lshl_or_b32 v11, v3, 5, v11
    s_lshl_b32 s6, s2, 3
    s_add_u32 s6, s6, s3
    s_lshl_b32 s6, s6, 10
    buffer_load_dwordx4 {vr(Q,4)}, v11, {sr(SQ,4)}, s6 offen
    v_lshlrev_b32 v{KA}, 4, v1
    s_lshl_b32 s40, s3, 10""")
    for c in range(8):
        e(f"""s_mov_b32 m0, s40
        s_add_u32 s41, s40, 0x10000
        buffer_load_dwordx4 v{KA}, {sr(SK,4)}, s40 offen lds
        s_mov_b32 m0, s41
        s_add_u32 s40, s40, 8192
        buffer_load_dwordx4 v{KA}, {sr(SK,4)}, s41 offen lds""")
    e(f"""v_mov_b32 v12, 0x3f803f80
    v_mov_b32 v13, 0x3f803f80
    s_lshl_b32 s7, s3, 9
    s_add_u32 s7, s7, {L_ONE}
    v_lshl_add_u32 v14, v1, 3, s7
    ds_write_b64 v14, v[12:13]
    v_lshlrev_b32 v14, 4, v3
    v_lshl_or_b32 v14, v2, 8, v14
    v_add_u32 v14, {L_V}, v14
    v_cmp_gt_u32 vcc, 16, v3
    v_mov_b32 v15, {L_ONE}
    v_mov_b32 v12, 0x1000
    v_cndmask_b32 v{VA}, v15, v14, vcc
    v_cndmask_b32 v{VS}, 0, v12, vcc
    s_waitcnt vmcnt(14) lgkmcnt(0)
    s_barrier""")
    def rdK(t): e(f"ds_read_b128 {vr(KB[t&1],4)}, v{KA} offset:{t*1024}")
    def rdV(t):
        if t and t%4==0: e(f"v_add_u32 v{VA}, v{VA}, v{VS}")
        for s in range(2): e(f"ds_read_b128 {vr(VB[t&1]+4*s,4)}, v{VA} offset:{(t&3)*1024+s*512}")
    def qk(t): e(f"{MF32} {vr(S[t&1],16)}, {vr(KB[t&1],4)}, {vr(Q,4)}, 0")
    def pv(t,s): e(f"{MF32} {vr(O,16)}, {vr(VB[t&1]+4*s,4)}, {vr(P+4*s,4)}, {vr(O,16) if (t or s) else 0}")
    rdK(0); rdK(1); rdV(0)
    e("s_waitcnt lgkmcnt(3)"); qk(0); e("s_nop 7\ns_nop 3")
    for t in range(64):
        s=S[t&1]
        ex=lambda i: e(f"v_exp_f32 v{s+i}, v{s+i}")
        cv=lambda i: e(f"v_cvt_pk_bf16_f32 v{P+i}, v{s+2*i}, v{s+2*i+1}")
        if (t+2)%8==0 and t+2<64:
            e(f"s_waitcnt vmcnt({14-2*((t+2)//8)}) lgkmcnt(0)\ns_barrier")
        else: e("s_waitcnt lgkmcnt(0)")
        if t+1<64: qk(t+1)
        if t+2<64: rdK(t+2)
        for i in range(4): ex(i)
        if t: pv(t-1,1)
        if t+1<64: rdV(t+1)
        cv(0);ex(4);ex(5);cv(1);ex(6);ex(7);cv(2);ex(8);cv(3);ex(9);ex(10)
        pv(t,0)
        ex(11);cv(4);ex(12);ex(13);cv(5);ex(14);ex(15);cv(6);cv(7)
    e("s_nop 1"); pv(63,1)
    e(f"""s_mov_b32 s42, {fhex(2.0**-40)}
    s_mov_b32 s43, {fhex(2.0**40)}
    s_nop 7
    s_nop 3
    v_cmp_le_f32 vcc, s42, v{O+8}
    v_cmp_ge_f32 s[44:45], s43, v{O+8}
    s_and_b64 vcc, vcc, s[44:45]
    s_cmp_eq_u64 vcc, -1
    s_cbranch_scc0 K2_fb
    K2_fin:
    v_rcp_f32 v12, v{O+8}
    s_nop 0""")
    for i in range(8): e(f"v_mul_f32 v{O+i}, v12, v{O+i}")
    for i in range(4): e(f"v_cvt_pk_bf16_f32 v{P+i}, v{O+2*i}, v{O+2*i+1}")
    e(f"buffer_store_dwordx4 {vr(P,4)}, v11, {sr(SO,4)}, s6 offen\ns_endpgm")
    e(f"""K2_fb:
    v_mov_b32 v12, 0xff800000
    v_mov_b32 v13, v{KA}
    s_mov_b32 s46, 64
    K2_fb1:
    ds_read_b128 {vr(KB[0],4)}, v13
    v_add_u32 v13, 0x400, v13
    s_waitcnt lgkmcnt(0)
    {MF32} {vr(S[0],16)}, {vr(KB[0],4)}, {vr(Q,4)}, 0
    s_nop 7
    s_nop 7""")
    for i in range(8): e(f"v_max3_f32 v12, v12, v{S[0]+2*i}, v{S[0]+2*i+1}")
    e(f"""s_sub_u32 s46, s46, 1
    s_cmp_lg_u32 s46, 0
    s_cbranch_scc1 K2_fb1
    v_xor_b32 v13, 32, v1
    v_lshlrev_b32 v13, 2, v13
    ds_bpermute_b32 v13, v13, v12
    s_waitcnt lgkmcnt(0)
    v_max_f32 v12, v12, v13""")
    for i in range(16): e(f"v_sub_f32 v{S[1]+i}, 0, v12\nv_mov_b32 v{O+i}, 0")
    e(f"""v_mov_b32 v13, v{KA}
    v_cndmask_b32 v{VA}, v15, v14, s[48:49]
    v_lshrrev_b32 v{VS}, 2, v{VS}
    s_mov_b32 s46, 64
    K2_fb2:
    ds_read_b128 {vr(KB[0],4)}, v13
    ds_read_b128 {vr(VB[0],4)}, v{VA}
    ds_read_b128 {vr(VB[0]+4,4)}, v{VA} offset:512
    v_add_u32 v13, 0x400, v13
    v_add_u32 v{VA}, v{VA}, v{VS}
    s_waitcnt lgkmcnt(0)
    {MF32} {vr(S[0],16)}, {vr(KB[0],4)}, {vr(Q,4)}, {vr(S[1],16)}
    s_nop 7
    s_nop 7""")
    for i in range(16): e(f"v_exp_f32 v{S[0]+i}, v{S[0]+i}")
    e("s_nop 0")
    for i in range(8): e(f"v_cvt_pk_bf16_f32 v{P+i}, v{S[0]+2*i}, v{S[0]+2*i+1}")
    e("s_nop 1")
    for s in range(2): e(f"{MF32} {vr(O,16)}, {vr(VB[0]+4*s,4)}, {vr(P+4*s,4)}, {vr(O,16)}")
    e(f"""s_sub_u32 s46, s46, 1
    s_cmp_lg_u32 s46, 0
    s_cbranch_scc1 K2_fb2
    s_nop 7
    s_nop 7
    s_branch K2_fin""")
def fft(e):
    D64=16; D32=64; TW1=88; TW2=104; X=120; A=136; T=152
    R=4; G=5; vX=6; vE1w=7; vE1r=8; vE2w=9; vE2r=10; vW=11; vZ=12
    SY=8; SYI=12; SZ=16; SZI=20; ST=24; SWR=28; SWI=32; SG=36
    C64=lambda t,ks,k: vr(D64+12*(2*t+ks)+4*k,4)
    C32=lambda t,k: vr(D32+12*t+4*k,4)
    srd(e,SY,78,WS_YT,2*MB); srd(e,SYI,78,WS_YT,2*MB); srd(e,SZ,78,WS_ZT,2*MB); srd(e,SZI,78,WS_ZT,2*MB)
    srd(e,ST,78,WS_TB,4*26*1024); srd(e,SWR,72,0,2048*514); srd(e,SWI,74,0,2048*514); srd(e,SG,78,WS_G,512*1024)
    e(f"""s_sub_u32 s3, s3, 8
    s_and_b32 s4, s3, 1
    s_lshr_b32 s5, s3, 1
    s_and_b32 s6, s2, 7
    s_lshl_b32 s6, s6, 5
    s_lshr_b32 s7, s2, 3
    s_add_u32 s6, s6, s7
    s_lshl_b32 s40, s6, 13
    s_add_u32 s41, s40, 4096
    s_lshl_b32 s42, s6, 1
    s_cmp_eq_u32 s6, 0
    s_cselect_b32 s{SYI+2}, 0, s{SYI+2}
    s_cselect_b32 s{SZI+2}, 0, s{SZI+2}
    s_cselect_b32 s47, 1, 0
    v_and_b32 v{R}, 15, v1
    v_lshrrev_b32 v{G}, 4, v1
    s_lshl_b32 s7, s4, 11
    v_lshlrev_b32 v13, 4, v{G}
    v_lshl_add_u32 v{vX}, v{R}, 7, v13
    v_add_u32 v{vX}, s7, v{vX}""")
    def ldx():
        for p in range(2):
            for ks in range(2): e(f"buffer_load_dwordx4 {vr(X+8*p+4*ks,4)}, v{vX}, {sr(SYI if p else SY,4)}, s{40+p} offen offset:{64*ks}")
    ldx()
    e(f"s_mul_i32 s43, s3, {26*1024}\nv_lshlrev_b32 v14, 4, v1")
    order=list(range(12))+list(range(18,22))+list(range(12,18))+list(range(22,26))
    for f in order:
        e(f"s_add_u32 s44, s43, {f*1024}\nbuffer_load_dwordx4 {vr(D64+4*f,4)}, v14, {sr(ST,4)}, s44 offen")
    e(f"""s_lshl_b32 s7, s5, 6
    v_add_u32 v{vZ}, s7, v{vX}
    v_and_b32 v15, 12, v{R}
    v_and_b32 v{vW}, 3, v{R}
    v_lshl_add_u32 v15, v15, 1, v{vW}
    s_lshl_b32 s7, s5, 5
    v_add_u32 v15, s7, v15
    v_mul_u32_u24 v15, 80, v15
    s_lshl_b32 s7, s4, 3
    s_add_u32 s7, s7, {L_E1}
    v_add3_u32 v{vE1w}, v15, v13, s7
    s_lshl_b32 s7, s3, 4
    v_add_u32 v15, s7, v{R}
    v_mul_u32_u24 v{vE1r}, 80, v15
    v_add_u32 v{vE1r}, {L_E1}, v{vE1r}
    v_add_u32 v{vE1r}, v{vE1r}, v13
    v_lshl_add_u32 v15, v{G}, 8, v15
    v_mul_u32_u24 v{vW}, 514, v15
    v_mul_u32_u24 v15, 144, v{R}
    s_lshl_b32 s7, s3, 5
    s_add_u32 s7, s7, {L_E2}
    v_lshl_add_u32 v{vE2w}, v{G}, 3, s7
    v_add_u32 v{vE2w}, v{vE2w}, v15
    s_mul_i32 s7, s4, {16*144}
    s_add_u32 s7, s7, {L_E2}
    v_add3_u32 v{vE2r}, v15, v13, s7
    s_barrier""")
    e(f"""s_cmp_ge_u32 s3, 2
    s_cbranch_scc1 K2_nog
    s_lshl_b32 s7, s2, 1
    s_add_u32 s7, s7, s3
    s_lshl_b32 s44, s7, 10
    s_and_b32 s45, s7, 31
    s_lshr_b32 s7, s7, 5
    s_lshl_b32 s7, s7, 5
    s_lshl_b32 s45, s45, 3""")
    swap23(e,A,3,A+1)
    e(f"""v_add_u32 v{A}, s7, v{A}
    v_cvt_f32_u32 v{A}, v{A}
    v_lshl_add_u32 v{A+1}, v2, 2, s45
    v_cmp_eq_u32 vcc, 0, v{A+1}
    v_cvt_f32_u32 v{A+1}, v{A+1}
    v_mul_f32 v{A+2}, {fhex(1/512)}, v{A}
    v_mul_f32 v{A+3}, v{A+2}, v{A+1}
    v_fract_f32 v{A+3}, v{A+3}
    v_mul_f32 v{A+4}, 0.5, v{A}
    v_mov_b32 v{A+5}, {fhex(1/256)}
    v_mov_b32 v{A+6}, {fhex(1/512)}
    v_cndmask_b32 v{A+6}, v{A+5}, v{A+6}, vcc""")
    for q in range(4):
        e(f"v_add_f32 v{T+2*q+1}, 0x3e800000, v{A+3}")
        if q==0: e(f"v_fract_f32 v{A+4}, v{A+4}\nv_cndmask_b32 v{T+1}, v{T+1}, v{A+4}, vcc")
        e(f"v_cos_f32 v{T+2*q}, v{A+3}\nv_cos_f32 v{T+2*q+1}, v{T+2*q+1}")
        if q<3: e(f"v_add_f32 v{A+3}, v{A+3}, v{A+2}")
    e("s_nop 0")
    for j in range(8): e(f"v_mul_f32 v{T+j}, v{A+6 if j<2 else A+5}, v{T+j}")
    for q in range(4): e(f"v_cvt_pk_bf16_f32 v{T+8+q}, v{T+2*q}, v{T+2*q+1}")
    e(f"""buffer_store_dwordx4 {vr(T+8,4)}, v14, {sr(SG,4)}, s44 offen
    s_waitcnt vmcnt(11)
    s_branch K2_col
    K2_nog:
    s_waitcnt vmcnt(10)
    K2_col:""")
    def cmul(t,c,s,sign):
        for i in range(4):
            ar=A+4*t+i; ai=A+8+4*t+i
            e(f"v_mul_f32 v{T+4*t+i}, v{ar}, v{c+i}\nv_mul_f32 v{T+8+4*t+i}, v{ai}, v{c+i}")
            e(f"v_fma_f32 v{T+4*t+i}, {'-' if sign>0 else ''}v{ai}, v{s+i}, v{T+4*t+i}")
            e(f"v_fma_f32 v{T+8+4*t+i}, {'' if sign>0 else '-'}v{ar}, v{s+i}, v{T+8+4*t+i}")
    def pack(src):
        for i in range(8): e(f"v_cvt_pk_bf16_f32 v{X+i}, v{src+2*i}, v{src+2*i+1}")
    xr=lambda ks: vr(X+4*ks,4); xi=lambda ks: vr(X+8+4*ks,4)
    ar=lambda t: vr(A+4*t,4); ai=lambda t: vr(A+8+4*t,4)
    for ks in range(2):
        for t in range(2):
            e(f"{MF16} {ar(t)}, {xr(ks)}, {C64(t,ks,0)}, {ar(t) if ks else 0}\n{MF16} {ai(t)}, {xi(ks)}, {C64(t,ks,0)}, {ai(t) if ks else 0}")
        for t in range(2):
            e(f"{MF16} {ar(t)}, {xi(ks)}, {C64(t,ks,1)}, {ar(t)}\n{MF16} {ai(t)}, {xr(ks)}, {C64(t,ks,2)}, {ai(t)}")
    e("s_nop 7")
    for t in range(2): cmul(t,TW1+8*t,TW1+8*t+4,-1)
    pack(T)
    for p in range(2):
        for t in range(2): e(f"ds_write_b64 v{vE1w}, {vr(X+4*p+2*t,2)} offset:{p*5120+t*320}")
    for i in range(16): e(f"v_mov_b32 v{T+i}, 0")
    for t in range(2):
        for i in range(4):
            e(f"s_add_u32 s44, s42, {(1024*t+64*i)*514}")
            e(f"buffer_load_short_d16_hi v{T+8*t+i}, v{vW}, {sr(SWR,4)}, s44 offen\nbuffer_load_short_d16_hi v{T+8*t+4+i}, v{vW}, {sr(SWI,4)}, s44 offen")
    e(f"""s_waitcnt lgkmcnt(0)
    s_barrier
    ds_read_b128 {vr(X,4)}, v{vE1r}
    ds_read_b128 {vr(X+4,4)}, v{vE1r} offset:5120
    s_waitcnt vmcnt(16) lgkmcnt(0)""")
    ur=vr(X,4); ui=vr(X+4,4)
    for t in range(2): e(f"{MF16} {ar(t)}, {C32(t,0)}, {ur}, 0\n{MF16} {ai(t)}, {C32(t,0)}, {ui}, 0")
    for t in range(2): e(f"{MF16} {ar(t)}, {C32(t,1)}, {ui}, {ar(t)}\n{MF16} {ai(t)}, {C32(t,2)}, {ur}, {ai(t)}")
    e("s_waitcnt vmcnt(0)\ns_nop 7")
    for t in range(2):
        for i in range(4):
            a=A+4*t+i; b=A+8+4*t+i; wr=T+8*t+i; wi=T+8*t+4+i
            e(f"""v_mul_f32 v13, v{b}, v{wi}
            v_mul_f32 v{wi}, v{a}, v{wi}
            v_fma_f32 v{a}, v{a}, v{wr}, -v13
            v_fma_f32 v{b}, v{b}, v{wr}, v{wi}""")
    pack(A)
    e("s_nop 1")
    for t in range(2): e(f"{MF16} {ar(t)}, {ur}, {C32(t,0)}, 0\n{MF16} {ai(t)}, {ui}, {C32(t,0)}, 0")
    for t in range(2): e(f"{MF16} {ar(t)}, {ui}, {C32(t,2)}, {ar(t)}\n{MF16} {ai(t)}, {ur}, {C32(t,1)}, {ai(t)}")
    e("s_nop 7")
    for t in range(2): cmul(t,TW2+8*t,TW2+8*t+4,1)
    pack(T)
    for p in range(2):
        for t in range(2): e(f"ds_write_b64 v{vE2w}, {vr(X+4*p+2*t,2)} offset:{p*4608+t*16*144}")
    e("s_waitcnt lgkmcnt(0)\ns_barrier")
    for p in range(2):
        for ks in range(2): e(f"ds_read_b128 {vr(X+8*p+4*ks,4)}, v{vE2r} offset:{p*4608+ks*64}")
    e("s_waitcnt lgkmcnt(0)")
    for ks in range(2):
        for t in range(2):
            e(f"{MF16} {ar(t)}, {C64(t,ks,0)}, {xr(ks)}, {ar(t) if ks else 0}\n{MF16} {ai(t)}, {C64(t,ks,0)}, {xi(ks)}, {ai(t) if ks else 0}")
        for t in range(2):
            e(f"{MF16} {ar(t)}, {C64(t,ks,2)}, {xi(ks)}, {ar(t)}\n{MF16} {ai(t)}, {C64(t,ks,1)}, {xr(ks)}, {ai(t)}")
    e("s_nop 7")
    for i in range(8): e(f"v_cvt_pk_bf16_f32 v{T+i}, v{A+2*i}, v{A+2*i+1}")
    e(f"""buffer_store_dwordx4 {vr(T,4)}, v{vZ}, {sr(SZ,4)}, s40 offen
    buffer_store_dwordx4 {vr(T+4,4)}, v{vZ}, {sr(SZI,4)}, s41 offen
    s_cmp_eq_u32 s47, 0
    s_cbranch_scc1 K2_exit
    s_mov_b32 s47, 0
    s_mov_b32 s40, 4096
    s_mov_b32 s42, 512""")
    ldx()
    e("s_waitcnt vmcnt(0)\ns_branch K2_col")
def k2(e):
    header(e,"k2_kernel")
    e(f"""s_cmp_ge_u32 s2, 256
    s_cbranch_scc1 K2_exit
    s_load_dwordx4 s[72:75], s[0:1], 48
    s_load_dwordx2 s[78:79], s[0:1], 80
    v_lshrrev_b32 v4, 6, v0
    v_and_b32 v1, 63, v0
    v_readfirstlane_b32 s3, v4
    v_lshrrev_b32 v2, 5, v1
    v_and_b32 v3, 31, v1
    v_cmp_gt_u32 s[48:49], 16, v3
    s_waitcnt lgkmcnt(0)
    s_cmp_ge_u32 s3, 8
    s_cbranch_scc1 K2_fft""")
    attn(e)
    e("K2_fft:")
    fft(e)
    e("K2_exit:\ns_endpgm")
```

```python
import sys
from gen_common import *
import gen_k13, gen_k2
ref=open('concat_heads__grouped_kv_mqa__spectral_gfnet__prompt.s.ref').read().split('\n')
top='\n'.join(l for l in ref[:12])+'\n'
top+=f"""; three launches: k1 = QKV projection + row DFT + FFT tables ; k2 = attention + column FFT/filter/IFFT ; k3 = out projection + inverse row DFT
; @launch kernel=k1_kernel grid=(257,1,1) block=(256,1,1) lds=81920
; @launch kernel=k2_kernel grid=(256,1,1) block=(768,1,1) lds={gen_k2.L_END}
; @launch kernel=k3_kernel grid=(256,1,1) block=(256,1,1) lds=65536
.amdgcn_target "amdgcn-amd-amdhsa--gfx950"
.text
"""
e=E(); gen_k13.k1(e); gen_k2.k2(e); gen_k13.k3(e)
s=top+e.text()+'.section .rodata,"a"\n'+''.join('.p2align 6\n'+desc(n,v) for n,v in (("k1_kernel",256),("k2_kernel",168),("k3_kernel",256)))
out=sys.argv[1] if len(sys.argv)>1 else 'concat_heads__grouped_kv_mqa__spectral_gfnet__prompt.s'
open(out,'w').write(s); print(len(s),'bytes')
```

```python
MB=1<<20
WS_Q=0; WS_KF=2*MB; WS_VF=2*MB+65536; WS_YT=3*MB; WS_O=5*MB; WS_ZT=7*MB; WS_G=9*MB; WS_TB=10*MB; WS_WT=13*MB
KA={'xa':0,'wq':8,'wk':16,'wv':24,'wo':32,'xb':40,'wr':48,'wi':56,'out':64,'dbg':72,'ws':80}
class E:
    def __init__(s): s.l=[]
    def __call__(s,x):
        for y in x.split('\n'):
            y=y.strip()
            if y: s.l.append(y if y.endswith(':') else '  '+y)
    def text(s): return '\n'.join(s.l)+'\n'
def vr(a,n): return f"v[{a}:{a+n-1}]" if n>1 else f"v{a}"
def sr(a,n): return f"s[{a}:{a+n-1}]"
def fhex(x):
    import struct
    return '0x%08x'%struct.unpack('<I',struct.pack('<f',x))[0]
def srd(e,d,b,off,size):
    if off:
        e(f"s_add_u32 s{d}, s{b}, {off}\ns_addc_u32 s{d+1}, s{b+1}, 0")
    else:
        e(f"s_mov_b32 s{d}, s{b}\ns_mov_b32 s{d+1}, s{b+1}")
    e(f"s_mov_b32 s{d+2}, {size}\ns_mov_b32 s{d+3}, 0x00020000")
def header(e,name):
    e(f".p2align 8\n.globl {name}\n.type {name},@function\n{name}:")
def desc(name,vg):
    return f""".amdhsa_kernel {name}
  .amdhsa_next_free_vgpr {vg}
  .amdhsa_next_free_sgpr 96
  .amdhsa_accum_offset {vg}
  .amdhsa_group_segment_fixed_size 0
  .amdhsa_kernarg_size 88
  .amdhsa_user_sgpr_count 2
  .amdhsa_user_sgpr_kernarg_segment_ptr 1
  .amdhsa_system_sgpr_workgroup_id_x 1
.end_amdhsa_kernel
"""
def swap23(e,d,s,t):
    e(f"""v_lshrrev_b32 v{t}, 1, v{s}
    v_xor_b32 v{t}, v{t}, v{s}
    v_and_b32 v{t}, 4, v{t}
    v_lshl_or_b32 v{d}, v{t}, 1, v{t}
    v_xor_b32 v{d}, v{d}, v{s}""")
MF32="v_mfma_f32_32x32x16_bf16"; MF16="v_mfma_f32_16x16x32_bf16"

import os
STAMP=int(os.environ.get('STAMP','0'))
def stamp_init(e):
    if STAMP: e("s_load_dwordx2 s[62:63], s[0:1], 72\ns_memrealtime s[84:85]\ns_memtime s[86:87]\ns_waitcnt lgkmcnt(0)")
def stamp(e,idx,wg,wave_s,wave,real=False,vt=(126,127)):
    if not STAMP: return
    lab=f"ST_{idx}"
    e(f"""s_cmp_lg_u32 s2, {wg}
    s_cbranch_scc1 {lab}
    s_cmp_lg_u32 s{wave_s}, {wave}
    s_cbranch_scc1 {lab}
    {'s_memrealtime' if real else 's_memtime'} s[88:89]
    s_waitcnt lgkmcnt(0)
    s_sub_u32 s88, s88, s{84 if real else 86}
    v_mov_b32 v{vt[0]}, s88
    v_mov_b32 v{vt[1]}, {4*idx}
    global_store_dword v{vt[1]}, v{vt[0]}, s[62:63]
    {lab}:""")

def wg_start(e):
    if STAMP: e("s_memrealtime s[90:91]\ns_load_dwordx2 s[92:93], s[0:1], 80")
_n=[0]
def wg_end(e,k,wave_s=3,wave=0):
    if not STAMP: return
    _n[0]+=1; lab=f"WE_{_n[0]}"
    e(f"""s_cmp_lg_u32 s{wave_s}, {wave}
    s_cbranch_scc1 {lab}
    s_waitcnt vmcnt(0)
    s_memrealtime s[88:89]
    s_lshl_b32 s94, s2, 3
    s_add_u32 s94, s94, {12*MB+k*8192}
    s_waitcnt lgkmcnt(0)
    v_mov_b32 v10, s90
    v_mov_b32 v11, s88
    v_mov_b32 v12, s94
    global_store_dwordx2 v12, v[10:11], s[92:93]
    {lab}:""")
```

```python
from gen_common import *
P0=128; ACC=64; SF=32
vL=1; vH=2; vN=3; vPO=4; vSO=5; vT0=6; vT1=7; vKV=8; vST=9; vA=10; vB=11; vC=12; vD=13
sW=3
SRD_P=8; SRD_S=12; SRD_O=16; SRD_X=20; SRD_Y=24
def prolog_ids(e):
    e(f"""v_lshrrev_b32 v{vA}, 6, v0
    v_and_b32 v{vL}, 63, v0
    v_readfirstlane_b32 s{sW}, v{vA}
    v_lshrrev_b32 v{vH}, 5, v{vL}
    v_and_b32 v{vN}, 31, v{vL}""")
def s_dma_voff(e,rowstride_log2):
    e(f"""v_lshrrev_b32 v{vA}, 2, v{vL}
    v_and_b32 v{vA}, 4, v{vA}
    v_xor_b32 v{vA}, v{vA}, v{vL}
    v_and_b32 v{vA}, 7, v{vA}
    v_lshlrev_b32 v{vA}, 4, v{vA}
    v_lshrrev_b32 v{vB}, 3, v{vL}
    v_lshl_or_b32 v{vSO}, v{vB}, {rowstride_log2}, v{vA}""")
def tr_addrs(e,swap):
    e(f"""v_and_b32 v{vA}, 3, v{vL}""")
    if swap: e(f"""v_lshrrev_b32 v{vB}, 1, v{vA}
    v_and_b32 v{vA}, 1, v{vA}
    v_lshl_or_b32 v{vA}, v{vA}, 1, v{vB}""")
    e(f"""v_lshlrev_b32 v{vA}, 3, v{vA}
    v_bfe_u32 v{vB}, v{vL}, 2, 2
    v_lshl_or_b32 v{vKV}, v{vB}, 5, v{vA}
    v_lshl_or_b32 v{vKV}, v{vH}, 8, v{vKV}
    v_add_u32 v{vKV}, 0x10000, v{vKV}
    v_lshl_or_b32 v{vA}, v{vB}, 7, v{vA}
    v_lshl_or_b32 v{vA}, v{vH}, 10, v{vA}
    v_bfe_u32 v{vB}, v{vL}, 4, 1
    v_lshl_or_b32 v{vA}, v{vB}, 5, v{vA}
    v_bfe_u32 v{vB}, v{vL}, 3, 1
    v_lshl_or_b32 v{vT0}, v{vB}, 6, v{vA}
    v_xor_b32 v{vT1}, 64, v{vT0}""")
def issue_loads(e,rowstride,pfrag,kv,sS,sP):
    e(f"s_lshl_b32 s40, s{sW}, 12\ns_mul_i32 s41, s{sW}, {32*rowstride}\ns_add_u32 s41, s41, s{sS}")
    if kv: e(f"s_lshl_b32 s42, s{sW}, 10\ns_add_u32 s43, s42, 0x10000\nv_lshlrev_b32 v{vA}, 4, v{vL}")
    for c in range(4):
        for i in range(4):
            e(f"s_mov_b32 m0, s40\ns_add_u32 s40, s40, {1024 if i<3 else 16384-3072}")
            e(f"buffer_load_dwordx4 v{vSO}, {sr(SRD_S,4)}, s41 offen lds")
            e(f"s_add_u32 s41, s41, {8*rowstride if i<3 else (128-24)*rowstride}")
        if kv:
            e(f"s_mov_b32 m0, s43\ns_add_u32 s43, s43, 4096")
            e(f"buffer_load_dwordx4 v{vA}, {sr(SRD_X,4)}, s42 offen lds\ns_add_u32 s42, s42, 4096")
        for k in range(8):
            ks=8*c+k
            if pfrag:
                e(f"buffer_load_dwordx4 {vr(P0+4*ks,4)}, v{vPO}, {sr(SRD_P,4)}, s{sP} offen offset:{(ks&3)*1024}")
                if ks&3==3: e(f"s_add_u32 s{sP}, s{sP}, 4096")
            else:
                e(f"buffer_load_dwordx4 {vr(P0+4*ks,4)}, v{vPO}, {sr(SRD_P,4)}, s{sP} offen offset:{ks*32}")
def main_tr(e,p_is_a,kvload,kv,sti=None):
    per=13 if kvload else 12; pre=per-8; T=4*per
    D=3 if kv else 4; L=D-1; nr=6 if kv else 4; st=12 if kv else 8
    base=28 if kv else 32
    done=[-1]
    def vwait(pos):
        if pos>done[0]:
            e(f"s_waitcnt vmcnt({T-pos-1})"); done[0]=pos
    def reads(ks):
        if ks%8==0:
            vwait(per*(ks//8)+pre-1); e("s_barrier")
            if sti is not None: stamp(e,sti+ks//8,40,3,1,vt=(14,15))
        b=base+st*(ks%D)
        for mt in range(2):
            for u in range(2):
                e(f"ds_read_b64_tr_b16 {vr(b+4*mt+2*u,2)}, v{vT0+mt} offset:{ks*2048+u*512}")
        if kv:
            for u in range(2): e(f"ds_read_b64_tr_b16 {vr(b+8+2*u,2)}, v{vKV} offset:{ks*512+u*128}")
    for ks in range(L): reads(ks)
    for ks in range(32):
        ahead=min(L-1,31-ks)
        vwait(per*(ks//8)+pre+ks%8)
        e(f"s_waitcnt lgkmcnt({ahead*nr})")
        b=base+st*(ks%D); p=vr(P0+4*ks,4)
        for mt in range(2):
            a=vr(ACC+16*mt,16); c=a if ks else '0'; s=vr(b+4*mt,4)
            e(f"{MF32} {a}, {p if p_is_a else s}, {s if p_is_a else p}, {c}")
        if kv:
            a=vr(ACC+32,16); c=a if ks else '0'; s=vr(b+8,4)
            e(f"{MF32} {a}, {s if kv=='K' else p}, {p if kv=='K' else s}, {c}")
        if ks+L<32: reads(ks+L)
def store_acc(e,acc,scale,srd_,voff,soff,off,tmp):
    if scale is not None:
        for i in range(16): e(f"v_mul_f32 v{acc+i}, {scale}, v{acc+i}")
    for i in range(8): e(f"v_cvt_pk_bf16_f32 v{tmp+i}, v{acc+2*i}, v{acc+2*i+1}")
    for j in range(2): e(f"buffer_store_dwordx4 {vr(tmp+4*j,4)}, v{voff}, {sr(srd_,4)}, {soff} offen offset:{off+32*j}")
def proj(e,pre,is_q):
    s_dma_voff(e,10); tr_addrs(e,True)
    e(f"""v_lshlrev_b32 v{vA}, 4, v{vH}
    v_lshl_or_b32 v{vPO}, v{vN}, 10, v{vA}
    s_lshl_b32 s6, s4, 2
    s_add_u32 s6, s6, s{sW}
    s_lshl_b32 s44, s6, 15
    s_lshl_b32 s45, s5, 7""")
    stamp_init(e)
    issue_loads(e,1024,False,is_q,45,44)
    stamp(e,0 if is_q else 20,40,3,1,vt=(14,15))
    if is_q:
        e(f"""s_and_b32 s7, s5, 3
        s_cmp_eq_u32 s7, s{sW}
        s_cbranch_scc0 {pre}_plain
        s_cmp_lt_u32 s5, 4
        s_cbranch_scc0 {pre}_v""")
        main_tr(e,False,True,'K')
        e("s_nop 7\ns_nop 7")
        for i in range(4): e(f"v_cvt_pk_bf16_f32 v{16+i}, v{ACC+32+2*i}, v{ACC+33+2*i}")
        e(f"""v_lshlrev_b32 v{vA}, 4, v{vL}
        s_lshl_b32 s46, s6, 10
        buffer_store_dwordx4 v[16:19], v{vA}, {sr(SRD_Y,4)}, s46 offen
        s_branch {pre}_epi
        {pre}_v:""")
        main_tr(e,False,True,'V')
        e("s_nop 7\ns_nop 7")
        for i in range(8): e(f"v_cvt_pk_bf16_f32 v{16+i}, v{ACC+32+2*i}, v{ACC+33+2*i}")
        e(f"""v_lshlrev_b32 v{vA}, 4, v{vN}
        v_lshl_or_b32 v{vA}, v{vH}, 8, v{vA}
        v_cmp_gt_u32 vcc, 16, v{vN}
        s_lshl_b32 s46, s6, 10
        s_add_u32 s46, s46, 0x10000
        s_and_saveexec_b64 s[48:49], vcc
        buffer_store_dwordx4 v[16:19], v{vA}, {sr(SRD_Y,4)}, s46 offen
        buffer_store_dwordx4 v[20:23], v{vA}, {sr(SRD_Y,4)}, s46 offen offset:512
        s_mov_b64 exec, s[48:49]
        s_branch {pre}_epi
        {pre}_plain:""")
    main_tr(e,False,is_q,None,1 if is_q else 21)
    e(f"{pre}_epi:")
    if is_q:
        e(f"s_add_u32 s44, s44, s45\ns_mov_b32 s47, {fhex(0.25*1.4426950408889634)}\ns_nop 7\ns_nop 3")
        vo=vPO
    else:
        e(f"""s_lshl_b32 s44, s44, 1
        s_add_u32 s44, s44, s45
        v_lshlrev_b32 v{vA}, 4, v{vH}
        v_lshl_or_b32 v{vST}, v{vN}, 11, v{vA}
        s_nop 7\ns_nop 3""")
        vo=vST
    stamp(e,5 if is_q else 25,40,3,1,vt=(14,15))
    for mt in range(2): store_acc(e,ACC+16*mt,'s47' if is_q else None,SRD_O,vo,'s44',64*mt,32+8*mt)
    if STAMP: e("s_waitcnt vmcnt(0)")
    stamp(e,6 if is_q else 26,40,3,1,vt=(14,15)); stamp(e,7 if is_q else 27,40,3,1,True,vt=(14,15))
    wg_end(e,0 if is_q else 2)
    e("s_endpgm")
```

```python
from gen_common import *
from gen_gemm import *
def trig8(e,dst,vA0,vS,offs,fn,tmp,neg=None):
    cst={1:'1.0',2:'2.0',4:'4.0'}
    for j,o in enumerate(offs):
        if o==0: e(f"{fn} v{tmp+j}, v{vA0}")
        else:
            if o not in cst: e(f"s_mov_b32 s60, {fhex(float(o))}")
            e(f"v_fma_f32 v{tmp+j}, v{vS}, {cst.get(o,'s60')}, v{vA0}\n{fn} v{tmp+j}, v{tmp+j}")
    e("s_nop 0")
    for i in range(4): e(f"v_cvt_pk_bf16_f32 v{dst+i}, v{tmp+2*i}, v{tmp+2*i+1}")
    if neg is not None:
        for i in range(4): e(f"v_xor_b32 v{neg+i}, 0x80008000, v{dst+i}")
def k1(e):
    header(e,"k1_kernel")
    e(f"""s_cmp_gt_u32 s2, 256
    s_cbranch_scc1 K1_exit
    s_load_dwordx8 s[64:71], s[0:1], 0
    s_load_dwordx2 s[72:73], s[0:1], 40
    s_load_dwordx4 s[80:83], s[0:1], 48
    s_load_dwordx2 s[78:79], s[0:1], 80""")
    wg_start(e)
    prolog_ids(e)
    e(f"""s_and_b32 s6, s2, 7
    s_lshr_b32 s7, s2, 3
    s_and_b32 s4, s7, 1
    s_lshl_b32 s6, s6, 1
    s_add_u32 s4, s4, s6
    s_bfe_u32 s5, s7, 0x30001
    s_waitcnt lgkmcnt(0)
    s_cmp_eq_u32 s2, 256
    s_cbranch_scc1 K1_tab
    s_cmp_ge_u32 s2, 128
    s_cbranch_scc1 K1_b""")
    srd(e,SRD_P,64,0,2*MB); srd(e,SRD_S,66,0,512*1024); srd(e,SRD_O,78,WS_Q,2*MB); srd(e,SRD_Y,78,WS_KF,131072)
    srd(e,SRD_X,68,0,16384)
    e(f"s_cmp_lt_u32 s5, 4\ns_cbranch_scc1 K1_k\ns_mov_b32 s{SRD_X}, s70\ns_mov_b32 s{SRD_X+1}, s71\nK1_k:")
    proj(e,"K1A",True)
    e("K1_b:")
    srd(e,SRD_P,72,0,2*MB); srd(e,SRD_O,78,WS_YT,2*MB)
    srd(e,SRD_S,80,0,2048*514); srd(e,SRD_X,82,0,2048*514); srd(e,SRD_Y,78,WS_WT,257*8192)
    WJ=[20,24,28,60]
    e(f"""s_sub_u32 s7, s2, 128
    s_lshl_b32 s7, s7, 2
    s_add_u32 s7, s7, s{sW}
    s_and_b32 s50, s7, 63
    s_lshr_b32 s51, s7, 6
    s_lshl_b32 s52, s51, 8
    s_add_u32 s52, s52, s50
    s_mul_i32 s52, s52, 514
    v_lshlrev_b32 v58, 1, v{vL}
    v_mul_u32_u24 v59, {64*514}, v{vL}""")
    for i in range(4):
        for j in range(4):
            e(f"buffer_load_ushort v{WJ[j]+i}, v58, {sr(SRD_S,4)}, s52 offen offset:{128*j}")
            e(f"buffer_load_ushort v{ACC+4*j+i}, v58, {sr(SRD_X,4)}, s52 offen offset:{128*j}")
        e(f"s_add_u32 s52, s52, {64*514}" if i<3 else f"s_sub_u32 s52, s52, {3*64*514}")
    e(f"""s_mov_b64 exec, 15
    buffer_load_ushort v56, v59, {sr(SRD_S,4)}, s52 offen offset:512
    buffer_load_ushort v{ACC+16}, v59, {sr(SRD_X,4)}, s52 offen offset:512
    s_mov_b64 exec, -1
    s_lshr_b32 s52, s50, 4
    s_lshl_b32 s52, s52, 11
    s_and_b32 s50, s50, 15
    s_lshl_b32 s50, s50, 4
    s_add_u32 s52, s52, s50
    s_lshl_b32 s51, s51, 8
    s_add_u32 s52, s52, s51
    v_lshlrev_b32 v57, 13, v{vL}""")
    swap23(e,vB,vN,vA)
    e(f"""v_lshlrev_b32 v{vA}, 4, v{vH}
    v_lshl_or_b32 v{vPO}, v{vB}, 15, v{vA}
    s_lshl_b32 s6, s4, 2
    s_add_u32 s6, s6, s{sW}
    s_and_b32 s44, s6, 1
    s_lshl_b32 s44, s44, 20
    s_lshr_b32 s45, s6, 1
    s_lshl_b32 s45, s45, 10
    s_add_u32 s44, s44, s45""")
    for ks in range(16):
        for hf in range(2):
            k=ks+16*hf
            e(f"buffer_load_dwordx4 {vr(P0+4*k,4)}, v{vPO}, {sr(SRD_P,4)}, s44 offen offset:{k*32}")
    for nt in range(2):
        e(f"""s_lshl_b32 s7, s5, 6
        s_add_u32 s7, s7, {32*nt}
        v_add_u32 v{vA}, s7, v{vN}
        v_lshrrev_b32 v{vB}, 1, v{vA}
        v_and_b32 v{vC}, 1, v{vA}
        v_cmp_eq_u32 vcc, 1, v{vA}
        v_mov_b32 v{vD}, 0x100
        v_cvt_f32_u32 v{vC}, v{vC}
        v_cndmask_b32 v{vB}, v{vB}, v{vD}, vcc
        v_mul_f32 v{vC}, 0x3e800000, v{vC}
        v_cndmask_b32 v{16+nt}, v{vC}, 0, vcc
        v_cvt_f32_u32 v{14+nt}, v{vB}
        v_mul_f32 v{14+nt}, {fhex(1/512)}, v{14+nt}
        v_lshlrev_b32 v{vB}, 31, v{vB}
        v_or_b32 v{18+nt}, 1.0, v{vB}""")
    e(f"""s_lshl_b32 s7, s{sW}, 4
    v_lshl_add_u32 v{vA}, v{vH}, 3, s7
    v_cvt_f32_u32 v0, v{vA}
    s_lshl_b32 s7, s{sW}, 11
    v_lshl_add_u32 v{vT1}, v{vL}, 4, s7
    v_lshlrev_b32 v{vT0}, 4, v{vL}""")
    for c in range(4):
        for nt in range(2):
            e(f"v_fma_f32 v8, v{14+nt}, v0, v{16+nt}\nv_fract_f32 v8, v8")
            tb=32+12*nt
            trig8(e,tb+8,8,14+nt,range(8),"v_cos_f32",tb)
            e(f"ds_write_b128 v{vT1}, {vr(tb+8,4)} offset:{c*8192+nt*1024}")
        if c<3: e(f"v_add_f32 v0, {fhex(64.0)}, v0")
    e("s_waitcnt vmcnt(32)")
    for j in range(4):
        for i in range(4): e(f"v_lshl_or_b32 v{WJ[j]+i}, v{ACC+4*j+i}, 16, v{WJ[j]+i}")
    e(f"v_lshl_or_b32 v56, v{ACC+16}, 16, v56")
    e("s_waitcnt lgkmcnt(0)\ns_barrier")
    D=3;L=2
    def reads(ks):
        for nt in range(2): e(f"ds_read_b128 {vr(32+8*(ks%D)+4*nt,4)}, v{vT0} offset:{ks*2048+nt*1024}")
    for ks in range(L): reads(ks)
    ns=0
    for ks in range(16):
        e(f"s_waitcnt vmcnt({30-2*ks+ns}) lgkmcnt({2*min(L-1,15-ks)})")
        if 10<=ks<14:
            e(f"buffer_store_dwordx4 {vr(WJ[ks-10],4)}, v57, {sr(SRD_Y,4)}, s52 offen\ns_add_u32 s52, s52, {64*8192}"); ns+=1
        if ks==14:
            e(f"v_lshlrev_b32 v57, 2, v{vL}\ns_mov_b64 exec, 15\nbuffer_store_dword v56, v57, {sr(SRD_Y,4)}, s52 offen\ns_mov_b64 exec, -1"); ns+=1
        for hf in range(2):
            for nt in range(2):
                a=vr(ACC+16*nt+32*hf,16)
                e(f"{MF32} {a}, {vr(P0+4*(ks+16*hf),4)}, {vr(32+8*(ks%D)+4*nt,4)}, {a if ks else 0}")
        if ks+L<16: reads(ks+L)
    e(f"""v_lshlrev_b32 v{vA}, 4, v{vH}
    v_lshl_or_b32 v{vST}, v{vN}, 12, v{vA}
    s_lshl_b32 s44, s5, 18
    s_lshl_b32 s45, s6, 6
    s_add_u32 s44, s44, s45
    s_add_u32 s45, s44, 0x20000
    s_nop 7""")
    for nt in range(2):
        for i in range(16): e(f"v_fma_f32 v{ACC+16*nt+i}, v{ACC+32+16*nt+i}, v{18+nt}, v{ACC+16*nt+i}")
        store_acc(e,ACC+16*nt,None,SRD_O,vST,f"s{44+nt}",0,32+8*nt)
    wg_end(e,0)
    e("s_endpgm")
    e("K1_tab:")
    srd(e,SRD_O,78,WS_TB,4*26*1024)
    R=14;G=15;A64=16;A32=18;F=20
    e(f"""v_and_b32 v{R}, 15, v{vL}
    v_lshrrev_b32 v{G}, 4, v{vL}
    v_lshlrev_b32 v{vST}, 4, v{vL}
    s_mul_i32 s44, s{sW}, {26*1024}
    s_lshr_b32 s5, s{sW}, 1
    s_and_b32 s4, s{sW}, 1
    s_lshl_b32 s6, s5, 5
    v_and_b32 v{vA}, 12, v{R}
    v_and_b32 v{vB}, 3, v{R}
    v_lshl_add_u32 v{vA}, v{vA}, 1, v{vB}
    v_add_u32 v{vA}, s6, v{vA}
    v_cvt_f32_u32 v{A64}, v{vA}
    v_add_f32 v{A64+1}, 4.0, v{A64}
    v_cvt_f32_u32 v{A32}, v{R}
    v_add_f32 v{A32+1}, {fhex(16.0)}, v{A32}
    v_cvt_f32_u32 v{F}, v{G}""")
    cnt=[0]
    def st(reg):
        e(f"buffer_store_dwordx4 {vr(reg,4)}, v{vST}, {sr(SRD_O,4)}, s44 offen\ns_add_u32 s44, s44, 1024"); cnt[0]+=1
    rb=[64]
    def nreg(n):
        r=rb[0]; rb[0]+=n; return r
    for t in range(2):
        for ks in range(2):
            e(f"""v_mul_f32 v21, {fhex(1/64)}, v{A64+t}
            v_mul_f32 v22, {fhex(8.0)}, v{F}
            v_add_f32 v22, {fhex(32.0*ks)}, v22
            v_mul_f32 v22, v22, v21
            v_fract_f32 v22, v22""")
            c=nreg(12)
            trig8(e,c,22,21,range(8),"v_cos_f32",32); trig8(e,c+4,22,21,range(8),"v_sin_f32",40,c+8)
            st(c);st(c+4);st(c+8)
    for t in range(2):
        e(f"""v_mul_f32 v21, {fhex(1/32)}, v{A32+t}
        v_mul_f32 v22, 4.0, v{F}
        v_mul_f32 v22, v22, v21
        v_fract_f32 v22, v22""")
        c=nreg(12); o=[0,1,2,3,16,17,18,19]
        trig8(e,c,22,21,o,"v_cos_f32",32); trig8(e,c+4,22,21,o,"v_sin_f32",40,c+8)
        st(c);st(c+4);st(c+8)
    for tw in range(2):
        e(f"""s_lshl_b32 s6, s{4 if tw==0 else sW}, 4
        v_lshl_add_u32 v23, v{G}, 2, s6
        v_cvt_f32_u32 v23, v23""")
        for t in range(2):
            e(f"v_mul_f32 v21, {fhex(1/2048)}, v{(A64 if tw==0 else A32)+t}\nv_mul_f32 v22, v21, v23")
            c=nreg(8)
            for i in range(4):
                e(f"v_cos_f32 v{c+i}, v22\nv_sin_f32 v{c+4+i}, v22")
                if i<3: e("v_add_f32 v22, v22, v21")
            if tw==1:
                e("s_nop 0")
                for i in range(8): e(f"v_mul_f32 v{c+i}, {fhex(1/2048)}, v{c+i}")
            e("s_nop 0");st(c);st(c+4)
    assert cnt[0]==26
    wg_end(e,0)
    e("K1_exit:\ns_endpgm")
def k3(e):
    header(e,"k3_kernel")
    e(f"""s_cmp_ge_u32 s2, 256
    s_cbranch_scc1 K3_exit
    s_load_dwordx2 s[66:67], s[0:1], 32
    s_load_dwordx2 s[76:77], s[0:1], 64
    s_load_dwordx2 s[78:79], s[0:1], 80""")
    wg_start(e)
    prolog_ids(e)
    e(f"""s_and_b32 s6, s2, 7
    s_lshr_b32 s7, s2, 3
    s_waitcnt lgkmcnt(0)""")
    srd(e,SRD_O,76,0,4*MB)
    e(f"""s_cmp_ge_u32 s2, 128
    s_cbranch_scc1 K3_b
    s_and_b32 s4, s7, 1
    s_lshl_b32 s6, s6, 1
    s_add_u32 s4, s4, s6
    s_bfe_u32 s5, s7, 0x30001""")
    srd(e,SRD_P,78,WS_O,2*MB); srd(e,SRD_S,66,0,512*1024)
    proj(e,"K3A",False)
    e(f"""K3_b:
    s_and_b32 s4, s7, 3
    s_lshl_b32 s6, s6, 2
    s_add_u32 s4, s4, s6
    s_bfe_u32 s5, s7, 0x20002
    s_lshl_b32 s5, s5, 2
    s_add_u32 s5, s5, s{sW}""")
    srd(e,SRD_P,78,WS_G,512*1024); srd(e,SRD_S,78,WS_ZT,2*MB)
    s_dma_voff(e,12); tr_addrs(e,False)
    e(f"""v_lshlrev_b32 v{vPO}, 4, v{vL}
    s_lshl_b32 s44, s5, 15
    s_lshl_b32 s45, s4, 7""")
    issue_loads(e,4096,True,False,45,44)
    main_tr(e,True,False,None)
    e(f"""v_lshlrev_b32 v{vA}, 4, v{vH}
    v_lshl_or_b32 v{vST}, v{vN}, 16, v{vA}
    s_lshl_b32 s44, s4, 11
    s_lshl_b32 s45, s5, 6
    s_add_u32 s44, s44, s45
    s_add_u32 s44, s44, 1024
    s_add_u32 s45, s44, {2*MB}
    s_nop 7""")
    for nt in range(2): store_acc(e,ACC+16*nt,None,SRD_O,vST,f"s{44+nt}",0,32+8*nt)
    wg_end(e,2)
    e("K3_exit:\ns_endpgm")
```

```python
from gen_common import *
L_V=65536; L_ONE=131072; L_E1=135168; L_E2=145408; L_END=154624
def attn(e):
    Q=4; VA=8; KA=9; VS=10; S=[16,32]; O=48; P=64; KB=[72,76]; VB=[80,88]
    SQ=8; SK=12; SO=16
    srd(e,SQ,78,WS_Q,2*MB); srd(e,SK,78,WS_KF,131072); srd(e,SO,78,WS_O,2*MB)
    e(f"""v_lshlrev_b32 v11, 4, v2
    v_lshl_or_b32 v11, v3, 5, v11
    s_lshl_b32 s6, s2, 3
    s_add_u32 s6, s6, s3
    s_lshl_b32 s6, s6, 10
    buffer_load_dwordx4 {vr(Q,4)}, v11, {sr(SQ,4)}, s6 offen
    v_lshlrev_b32 v{KA}, 4, v1
    s_lshl_b32 s40, s3, 10""")
    def chunk():
        e(f"""s_mov_b32 m0, s40
        s_add_u32 s41, s40, 0x10000
        buffer_load_dwordx4 v{KA}, {sr(SK,4)}, s40 offen lds
        s_mov_b32 m0, s41
        s_add_u32 s40, s40, 8192
        buffer_load_dwordx4 v{KA}, {sr(SK,4)}, s41 offen lds""")
    for c in range(3): chunk()
    e(f"""v_mov_b32 v12, 0x3f803f80
    v_mov_b32 v13, 0x3f803f80
    s_lshl_b32 s7, s3, 9
    s_add_u32 s7, s7, {L_ONE}
    v_lshl_add_u32 v14, v1, 3, s7
    ds_write_b64 v14, v[12:13]
    v_lshlrev_b32 v14, 4, v3
    v_lshl_or_b32 v14, v2, 8, v14
    v_add_u32 v14, {L_V}, v14
    v_cmp_gt_u32 vcc, 16, v3
    v_mov_b32 v15, {L_ONE}
    v_mov_b32 v12, 0x1000
    v_cndmask_b32 v{VA}, v15, v14, vcc
    v_cndmask_b32 v{VS}, 0, v12, vcc
    s_waitcnt vmcnt(4) lgkmcnt(0)
    s_barrier""")
    def rdK(t): e(f"ds_read_b128 {vr(KB[t&1],4)}, v{KA} offset:{t*1024}")
    def rdV(t):
        if t and t%4==0: e(f"v_add_u32 v{VA}, v{VA}, v{VS}")
        for s in range(2): e(f"ds_read_b128 {vr(VB[t&1]+4*s,4)}, v{VA} offset:{(t&3)*1024+s*512}")
    def qk(t): e(f"{MF32} {vr(S[t&1],16)}, {vr(KB[t&1],4)}, {vr(Q,4)}, 0")
    def pv(t,s): e(f"{MF32} {vr(O,16)}, {vr(VB[t&1]+4*s,4)}, {vr(P+4*s,4)}, {vr(O,16) if (t or s) else 0}")
    stamp(e,8,100,3,0)
    rdK(0); rdK(1); rdV(0)
    e("s_waitcnt lgkmcnt(3)"); qk(0); e("s_nop 7\ns_nop 3")
    for t in range(64):
        s=S[t&1]
        ex=lambda i: e(f"v_exp_f32 v{s+i}, v{s+i}")
        cv=lambda i: e(f"v_cvt_pk_bf16_f32 v{P+i}, v{s+2*i}, v{s+2*i+1}")
        if (t+2)%8==0 and t+2<64:
            c=(t+2)//8
            e(f"s_waitcnt vmcnt({2 if c<7 else 0}) lgkmcnt(0)\ns_barrier")
            if c+2<8: chunk()
        else: e("s_waitcnt lgkmcnt(0)")
        if t%8==7: stamp(e,9+t//8,100,3,0)
        if t+1<64: qk(t+1)
        if t+2<64: rdK(t+2)
        for i in range(4): ex(i)
        if t: pv(t-1,1)
        if t+1<64: rdV(t+1)
        cv(0);ex(4);ex(5);cv(1);ex(6);ex(7);cv(2);ex(8);cv(3);ex(9);ex(10)
        pv(t,0)
        ex(11);cv(4);ex(12);ex(13);cv(5);ex(14);ex(15);cv(6);cv(7)
    e("s_nop 1"); pv(63,1)
    e(f"""s_mov_b32 s42, {fhex(2.0**-40)}
    s_mov_b32 s43, {fhex(2.0**40)}
    s_nop 7
    s_nop 3
    v_cmp_le_f32 vcc, s42, v{O+8}
    v_cmp_ge_f32 s[44:45], s43, v{O+8}
    s_and_b64 vcc, vcc, s[44:45]
    s_cmp_eq_u64 vcc, -1
    s_cbranch_scc0 K2_fb
    K2_fin:
    v_rcp_f32 v12, v{O+8}
    s_nop 0""")
    for i in range(8): e(f"v_mul_f32 v{O+i}, v12, v{O+i}")
    for i in range(4): e(f"v_cvt_pk_bf16_f32 v{P+i}, v{O+2*i}, v{O+2*i+1}")
    e(f"buffer_store_dwordx4 {vr(P,4)}, v11, {sr(SO,4)}, s6 offen")
    stamp(e,17,100,3,0); stamp(e,18,100,3,0,True); wg_end(e,1); e("s_endpgm")
    e(f"""K2_fb:
    v_mov_b32 v12, 0xff800000
    v_mov_b32 v13, v{KA}
    s_mov_b32 s46, 64
    K2_fb1:
    ds_read_b128 {vr(KB[0],4)}, v13
    v_add_u32 v13, 0x400, v13
    s_waitcnt lgkmcnt(0)
    {MF32} {vr(S[0],16)}, {vr(KB[0],4)}, {vr(Q,4)}, 0
    s_nop 7
    s_nop 7""")
    for i in range(8): e(f"v_max3_f32 v12, v12, v{S[0]+2*i}, v{S[0]+2*i+1}")
    e(f"""s_sub_u32 s46, s46, 1
    s_cmp_lg_u32 s46, 0
    s_cbranch_scc1 K2_fb1
    v_xor_b32 v13, 32, v1
    v_lshlrev_b32 v13, 2, v13
    ds_bpermute_b32 v13, v13, v12
    s_waitcnt lgkmcnt(0)
    v_max_f32 v12, v12, v13""")
    for i in range(16): e(f"v_sub_f32 v{S[1]+i}, 0, v12\nv_mov_b32 v{O+i}, 0")
    e(f"""v_mov_b32 v13, v{KA}
    v_cndmask_b32 v{VA}, v15, v14, s[48:49]
    v_lshrrev_b32 v{VS}, 2, v{VS}
    s_mov_b32 s46, 64
    K2_fb2:
    ds_read_b128 {vr(KB[0],4)}, v13
    ds_read_b128 {vr(VB[0],4)}, v{VA}
    ds_read_b128 {vr(VB[0]+4,4)}, v{VA} offset:512
    v_add_u32 v13, 0x400, v13
    v_add_u32 v{VA}, v{VA}, v{VS}
    s_waitcnt lgkmcnt(0)
    {MF32} {vr(S[0],16)}, {vr(KB[0],4)}, {vr(Q,4)}, {vr(S[1],16)}
    s_nop 7
    s_nop 7""")
    for i in range(16): e(f"v_exp_f32 v{S[0]+i}, v{S[0]+i}")
    e("s_nop 0")
    for i in range(8): e(f"v_cvt_pk_bf16_f32 v{P+i}, v{S[0]+2*i}, v{S[0]+2*i+1}")
    e("s_nop 1")
    for s in range(2): e(f"{MF32} {vr(O,16)}, {vr(VB[0]+4*s,4)}, {vr(P+4*s,4)}, {vr(O,16)}")
    e(f"""s_sub_u32 s46, s46, 1
    s_cmp_lg_u32 s46, 0
    s_cbranch_scc1 K2_fb2
    s_nop 7
    s_nop 7
    s_branch K2_fin""")
def fft(e):
    D64=16; D32=64; TW1=88; TW2=104; X=120; A=136; T=152
    R=4; G=5; vX=6; vE1w=7; vE1r=8; vE2w=9; vE2r=10; vW=11; vZ=12
    SY=8; SYI=12; SZ=16; SZI=20; ST=24; SWR=28; SWI=32; SG=36
    C64=lambda t,ks,k: vr(D64+12*(2*t+ks)+4*k,4)
    C32=lambda t,k: vr(D32+12*t+4*k,4)
    srd(e,SY,78,WS_YT,2*MB); srd(e,SYI,78,WS_YT,2*MB); srd(e,SZ,78,WS_ZT,2*MB); srd(e,SZI,78,WS_ZT,2*MB)
    srd(e,ST,78,WS_TB,4*26*1024); srd(e,SWR,78,WS_WT,257*8192); srd(e,SG,78,WS_G,512*1024)
    e(f"""s_sub_u32 s3, s3, 8
    s_and_b32 s4, s3, 1
    s_lshr_b32 s5, s3, 1
    s_and_b32 s6, s2, 7
    s_lshl_b32 s6, s6, 5
    s_lshr_b32 s7, s2, 3
    s_add_u32 s6, s6, s7
    s_lshl_b32 s40, s6, 13
    s_add_u32 s41, s40, 4096
    s_lshl_b32 s42, s6, 13
    s_lshl_b32 s7, s3, 11
    s_add_u32 s42, s42, s7
    s_cmp_eq_u32 s6, 0
    s_cselect_b32 s{SYI+2}, 0, s{SYI+2}
    s_cselect_b32 s{SZI+2}, 0, s{SZI+2}
    s_cselect_b32 s47, 1, 0
    v_and_b32 v{R}, 15, v1
    v_lshrrev_b32 v{G}, 4, v1
    s_lshl_b32 s7, s4, 11
    v_lshlrev_b32 v13, 4, v{G}
    v_lshl_add_u32 v{vX}, v{R}, 7, v13
    v_add_u32 v{vX}, s7, v{vX}""")
    def ldx():
        for p in range(2):
            for ks in range(2): e(f"buffer_load_dwordx4 {vr(X+8*p+4*ks,4)}, v{vX}, {sr(SYI if p else SY,4)}, s{40+p} offen offset:{64*ks}")
    WB=X+8
    def ldw():
        for t in range(2): e(f"buffer_load_dwordx4 {vr(WB+4*t,4)}, v14, {sr(SWR,4)}, s42 offen offset:{1024*t}")
    e(f"s_mul_i32 s43, s3, {26*1024}\nv_lshlrev_b32 v14, 4, v1")
    e(f"""s_lshl_b32 s7, s5, 6
    v_add_u32 v{vZ}, s7, v{vX}
    v_and_b32 v15, 12, v{R}
    v_and_b32 v{vW}, 3, v{R}
    v_lshl_add_u32 v15, v15, 1, v{vW}
    s_lshl_b32 s7, s5, 5
    v_add_u32 v15, s7, v15
    v_mul_u32_u24 v15, 80, v15
    s_lshl_b32 s7, s4, 3
    s_add_u32 s7, s7, {L_E1}
    v_add3_u32 v{vE1w}, v15, v13, s7
    s_lshl_b32 s7, s3, 4
    v_add_u32 v15, s7, v{R}
    v_mul_u32_u24 v{vE1r}, 80, v15
    v_add_u32 v{vE1r}, {L_E1}, v{vE1r}
    v_add_u32 v{vE1r}, v{vE1r}, v13
    v_mul_u32_u24 v15, 144, v{R}
    s_lshl_b32 s7, s3, 5
    s_add_u32 s7, s7, {L_E2}
    v_lshl_add_u32 v{vE2w}, v{G}, 3, s7
    v_add_u32 v{vE2w}, v{vE2w}, v15
    s_mul_i32 s7, s4, {16*144}
    s_add_u32 s7, s7, {L_E2}
    v_add3_u32 v{vE2r}, v15, v13, s7""")
    e(f"""s_cmp_ge_u32 s3, 2
    s_cbranch_scc1 K2_nog
    s_lshl_b32 s7, s2, 1
    s_add_u32 s7, s7, s3
    s_lshl_b32 s44, s7, 10
    s_and_b32 s45, s7, 31
    s_lshr_b32 s7, s7, 5
    s_lshl_b32 s7, s7, 5
    s_lshl_b32 s45, s45, 3""")
    swap23(e,A,3,A+1)
    e(f"""v_add_u32 v{A}, s7, v{A}
    v_cvt_f32_u32 v{A}, v{A}
    v_lshl_add_u32 v{A+1}, v2, 2, s45
    v_cmp_eq_u32 vcc, 0, v{A+1}
    v_cvt_f32_u32 v{A+1}, v{A+1}
    v_mul_f32 v{A+2}, {fhex(1/512)}, v{A}
    v_mul_f32 v{A+3}, v{A+2}, v{A+1}
    v_fract_f32 v{A+3}, v{A+3}
    v_mul_f32 v{A+4}, 0.5, v{A}
    v_mov_b32 v{A+5}, {fhex(1/256)}
    v_mov_b32 v{A+6}, {fhex(1/512)}
    v_cndmask_b32 v{A+6}, v{A+5}, v{A+6}, vcc""")
    for q in range(4):
        e(f"v_add_f32 v{T+2*q+1}, 0x3e800000, v{A+3}")
        if q==0: e(f"v_fract_f32 v{A+4}, v{A+4}\nv_cndmask_b32 v{T+1}, v{T+1}, v{A+4}, vcc")
        e(f"v_cos_f32 v{T+2*q}, v{A+3}\nv_cos_f32 v{T+2*q+1}, v{T+2*q+1}")
        if q<3: e(f"v_add_f32 v{A+3}, v{A+3}, v{A+2}")
    e("s_nop 0")
    for j in range(8): e(f"v_mul_f32 v{T+j}, v{A+6 if j<2 else A+5}, v{T+j}")
    for q in range(4): e(f"v_cvt_pk_bf16_f32 v{T+8+q}, v{T+2*q}, v{T+2*q+1}")
    e(f"""buffer_store_dwordx4 {vr(T+8,4)}, v14, {sr(SG,4)}, s44 offen
    K2_nog:
    s_barrier""")
    ldx()
    order=list(range(12))+list(range(18,22))+list(range(12,18))+list(range(22,26))
    for f in order:
        e(f"s_add_u32 s44, s43, {f*1024}\nbuffer_load_dwordx4 {vr(D64+4*f,4)}, v14, {sr(ST,4)}, s44 offen")
    e("s_barrier\ns_waitcnt vmcnt(10)\nK2_col:")
    def cmul(t,c,s,sign):
        for i in range(4):
            ar=A+4*t+i; ai=A+8+4*t+i
            e(f"v_mul_f32 v{T+4*t+i}, v{ar}, v{c+i}\nv_mul_f32 v{T+8+4*t+i}, v{ai}, v{c+i}")
            e(f"v_fma_f32 v{T+4*t+i}, {'-' if sign>0 else ''}v{ai}, v{s+i}, v{T+4*t+i}")
            e(f"v_fma_f32 v{T+8+4*t+i}, {'' if sign>0 else '-'}v{ar}, v{s+i}, v{T+8+4*t+i}")
    def pack(src):
        for i in range(8): e(f"v_cvt_pk_bf16_f32 v{X+i}, v{src+2*i}, v{src+2*i+1}")
    xr=lambda ks: vr(X+4*ks,4); xi=lambda ks: vr(X+8+4*ks,4)
    ar=lambda t: vr(A+4*t,4); ai=lambda t: vr(A+8+4*t,4)
    for ks in range(2):
        for t in range(2):
            e(f"{MF16} {ar(t)}, {xr(ks)}, {C64(t,ks,0)}, {ar(t) if ks else 0}\n{MF16} {ai(t)}, {xi(ks)}, {C64(t,ks,0)}, {ai(t) if ks else 0}")
        for t in range(2):
            e(f"{MF16} {ar(t)}, {xi(ks)}, {C64(t,ks,1)}, {ar(t)}\n{MF16} {ai(t)}, {xr(ks)}, {C64(t,ks,2)}, {ai(t)}")
    e("s_nop 7")
    ldw()
    for t in range(2): cmul(t,TW1+8*t,TW1+8*t+4,-1)
    pack(T)
    for p in range(2):
        for t in range(2): e(f"ds_write_b64 v{vE1w}, {vr(X+4*p+2*t,2)} offset:{p*5120+t*320}")
    e(f"""s_waitcnt lgkmcnt(0)
    s_barrier
    ds_read_b128 {vr(X,4)}, v{vE1r}
    ds_read_b128 {vr(X+4,4)}, v{vE1r} offset:5120
    s_waitcnt vmcnt(0) lgkmcnt(0)""")
    ur=vr(X,4); ui=vr(X+4,4)
    for t in range(2): e(f"{MF16} {ar(t)}, {C32(t,0)}, {ur}, 0\n{MF16} {ai(t)}, {C32(t,0)}, {ui}, 0")
    for t in range(2): e(f"{MF16} {ar(t)}, {C32(t,1)}, {ui}, {ar(t)}\n{MF16} {ai(t)}, {C32(t,2)}, {ur}, {ai(t)}")
    for i in range(8): e(f"v_lshlrev_b32 v{T+i}, 16, v{WB+i}\nv_and_b32 v{WB+i}, 0xffff0000, v{WB+i}")
    e("s_nop 1")
    for t in range(2):
        for i in range(4):
            a=A+4*t+i; b=A+8+4*t+i; wr=T+4*t+i; wi=WB+4*t+i
            e(f"""v_mul_f32 v13, v{b}, v{wi}
            v_mul_f32 v{wi}, v{a}, v{wi}
            v_fma_f32 v{a}, v{a}, v{wr}, -v13
            v_fma_f32 v{b}, v{b}, v{wr}, v{wi}""")
    pack(A)
    e("s_nop 1")
    for t in range(2): e(f"{MF16} {ar(t)}, {ur}, {C32(t,0)}, 0\n{MF16} {ai(t)}, {ui}, {C32(t,0)}, 0")
    for t in range(2): e(f"{MF16} {ar(t)}, {ui}, {C32(t,2)}, {ar(t)}\n{MF16} {ai(t)}, {ur}, {C32(t,1)}, {ai(t)}")
    e("s_nop 7")
    for t in range(2): cmul(t,TW2+8*t,TW2+8*t+4,1)
    pack(T)
    for p in range(2):
        for t in range(2): e(f"ds_write_b64 v{vE2w}, {vr(X+4*p+2*t,2)} offset:{p*4608+t*16*144}")
    e("s_waitcnt lgkmcnt(0)\ns_barrier")
    for p in range(2):
        for ks in range(2): e(f"ds_read_b128 {vr(X+8*p+4*ks,4)}, v{vE2r} offset:{p*4608+ks*64}")
    e("s_waitcnt lgkmcnt(0)")
    for ks in range(2):
        for t in range(2):
            e(f"{MF16} {ar(t)}, {C64(t,ks,0)}, {xr(ks)}, {ar(t) if ks else 0}\n{MF16} {ai(t)}, {C64(t,ks,0)}, {xi(ks)}, {ai(t) if ks else 0}")
        for t in range(2):
            e(f"{MF16} {ar(t)}, {C64(t,ks,2)}, {xi(ks)}, {ar(t)}\n{MF16} {ai(t)}, {C64(t,ks,1)}, {xr(ks)}, {ai(t)}")
    e("s_nop 7")
    for i in range(8): e(f"v_cvt_pk_bf16_f32 v{T+i}, v{A+2*i}, v{A+2*i+1}")
    e(f"""buffer_store_dwordx4 {vr(T,4)}, v{vZ}, {sr(SZ,4)}, s40 offen
    buffer_store_dwordx4 {vr(T+4,4)}, v{vZ}, {sr(SZI,4)}, s41 offen
    s_cmp_eq_u32 s47, 0
    s_cbranch_scc1 K2_exit
    s_mov_b32 s47, 0
    s_mov_b32 s40, 4096
    s_add_u32 s42, s42, {256*8192}""")
    ldx()
    e("s_waitcnt vmcnt(0)\ns_branch K2_col")
def k2(e):
    header(e,"k2_kernel")
    wg_start(e)
    e(f"""s_cmp_ge_u32 s2, 256
    s_cbranch_scc1 K2_exit
    s_load_dwordx2 s[78:79], s[0:1], 80
    v_lshrrev_b32 v4, 6, v0
    v_and_b32 v1, 63, v0
    v_readfirstlane_b32 s3, v4
    v_lshrrev_b32 v2, 5, v1
    v_and_b32 v3, 31, v1
    v_cmp_gt_u32 s[48:49], 16, v3
    s_waitcnt lgkmcnt(0)
    s_cmp_ge_u32 s3, 8
    s_cbranch_scc1 K2_fft""")
    stamp_init(e)
    attn(e)
    e("K2_fft:")
    fft(e)
    e("K2_exit:\ns_endpgm")
```

```python
from gen_common import *
P0=128; ACC=64; SF=32
vL=1; vH=2; vN=3; vPO=4; vSO=5; vT0=6; vT1=7; vKV=8; vST=9; vA=10; vB=11; vC=12; vD=13
sW=3
SRD_P=8; SRD_S=12; SRD_O=16; SRD_X=20; SRD_Y=24
def prolog_ids(e):
    e(f"""v_lshrrev_b32 v{vA}, 6, v0
    v_and_b32 v{vL}, 63, v0
    v_readfirstlane_b32 s{sW}, v{vA}
    v_lshrrev_b32 v{vH}, 5, v{vL}
    v_and_b32 v{vN}, 31, v{vL}""")
def s_dma_voff(e,rowstride_log2):
    e(f"""v_lshrrev_b32 v{vA}, 2, v{vL}
    v_and_b32 v{vA}, 4, v{vA}
    v_xor_b32 v{vA}, v{vA}, v{vL}
    v_and_b32 v{vA}, 7, v{vA}
    v_lshlrev_b32 v{vA}, 4, v{vA}
    v_lshrrev_b32 v{vB}, 3, v{vL}
    v_lshl_or_b32 v{vSO}, v{vB}, {rowstride_log2}, v{vA}""")
def tr_addrs(e,swap):
    e(f"""v_and_b32 v{vA}, 3, v{vL}""")
    if swap: e(f"""v_lshrrev_b32 v{vB}, 1, v{vA}
    v_and_b32 v{vA}, 1, v{vA}
    v_lshl_or_b32 v{vA}, v{vA}, 1, v{vB}""")
    e(f"""v_lshlrev_b32 v{vA}, 3, v{vA}
    v_bfe_u32 v{vB}, v{vL}, 2, 2
    v_lshl_or_b32 v{vKV}, v{vB}, 5, v{vA}
    v_lshl_or_b32 v{vKV}, v{vH}, 8, v{vKV}
    v_add_u32 v{vKV}, 0x10000, v{vKV}
    v_lshl_or_b32 v{vA}, v{vB}, 7, v{vA}
    v_lshl_or_b32 v{vA}, v{vH}, 10, v{vA}
    v_bfe_u32 v{vB}, v{vL}, 4, 1
    v_lshl_or_b32 v{vA}, v{vB}, 5, v{vA}
    v_bfe_u32 v{vB}, v{vL}, 3, 1
    v_lshl_or_b32 v{vT0}, v{vB}, 6, v{vA}
    v_xor_b32 v{vT1}, 64, v{vT0}""")
def seg128_addr(e,d,rowlog,swap=False):
    e(f"v_and_b32 v{vB}, 7, v{vL}")
    if swap: e(f"v_and_b32 v{vC}, 4, v{vL}\nv_add_u32 v{vB}, v{vB}, v{vC}")
    e(f"""v_bfe_u32 v{vA}, v{vL}, 3, 2
    v_lshlrev_b32 v{vA}, 5, v{vA}
    v_lshl_or_b32 v{vA}, v{vH}, 4, v{vA}
    v_lshl_or_b32 v{d}, v{vB}, {rowlog}, v{vA}""")
def xpose4(e,ks,T):
    R=[P0+4*(ks+q) for q in range(4)]
    for a in range(2):
        for i in range(4): e(f"v_mov_b32_dpp v{T[a]+i}, v{R[2*a]+i} row_ror:8 row_mask:0xf bank_mask:0xf")
    for a in range(2):
        for i in range(4): e(f"v_mov_b32_dpp v{R[2*a]+i}, v{R[2*a+1]+i} row_ror:8 row_mask:0xf bank_mask:0xc")
    for a in range(2):
        for i in range(4): e(f"v_mov_b32_dpp v{R[2*a+1]+i}, v{T[a]+i} quad_perm:[0,1,2,3] row_mask:0xf bank_mask:0x3")
    for a in range(2):
        for i in range(4): e(f"v_permlane16_swap_b32 v{R[a]+i}, v{R[a+2]+i}")
def load_list(e,rowstride,pfrag,kv,sS,sP):
    e(f"s_lshl_b32 s40, s{sW}, 12\ns_mul_i32 s54, s{sW}, {32*rowstride}\ns_add_u32 s54, s54, s{sS}")
    if kv: e(f"s_lshl_b32 s56, s{sW}, 10\ns_add_u32 s43, s56, 0x10000\nv_lshlrev_b32 v{vD}, 4, v{vL}")
    Ld=[]
    for c in range(4):
        hd=(f"s_add_u32 s55, s53, {c}\ns_and_b32 s55, s55, 3\ns_mul_i32 s41, s55, {128*rowstride}\ns_add_u32 s41, s41, s54\n"
            f"s_lshl_b32 s57, s55, {13 if pfrag else 8}\ns_add_u32 s57, s57, s{sP}\n")
        if kv: hd+="s_lshl_b32 s42, s55, 12\ns_add_u32 s42, s42, s56\n"
        for i in range(4):
            Ld.append((hd if i==0 else "")+f"s_mov_b32 m0, s40\ns_add_u32 s40, s40, {1024 if i<3 else 16384-3072}\n"
              f"buffer_load_dwordx4 v{vSO}, {sr(SRD_S,4)}, s41 offen lds"+(f"\ns_add_u32 s41, s41, {8*rowstride}" if i<3 else ""))
        if kv:
            Ld.append(f"s_mov_b32 m0, s43\ns_add_u32 s43, s43, 4096\n"
              f"buffer_load_dwordx4 v{vD}, {sr(SRD_X,4)}, s42 offen lds")
        for k in range(8):
            ks=8*c+k
            if pfrag:
                Ld.append(f"buffer_load_dwordx4 {vr(P0+4*ks,4)}, v{vPO}, {sr(SRD_P,4)}, s57 offen offset:{(ks&3)*1024}"+(f"\ns_add_u32 s57, s57, 4096" if k==3 else ""))
            else:
                Ld.append(f"s_add_u32 s58, s57, {(k&3)*8192}\nbuffer_load_dwordx4 {vr(P0+4*ks,4)}, v{vPO}, {sr(SRD_P,4)}, s58 offen offset:{(k>>2)*128}")
    return Ld
ROT=int(os.environ.get('ROT','0'))
PRE=int(os.environ.get('PRE','2'))
def pre_loads(e,Ld):
    for x in Ld[:PRE*len(Ld)//4]: e(x)
def main_tr(e,p_is_a,Ld,kv,seg,sti=None):
    per=len(Ld)//4; pre=per-8
    D=3 if kv else 4; L=D-1; nr=6 if kv else 4; st=12 if kv else 8
    base=28 if kv else 32
    done=[-1]; iss=[PRE*per]
    def issue(n):
        while iss[0]<min(n,len(Ld)): e(Ld[iss[0]]); iss[0]+=1
    def vwait(pos):
        issue(pos+1)
        if pos>done[0]:
            e(f"s_waitcnt vmcnt({iss[0]-pos-1})"); done[0]=pos
    def reads(ks):
        if ks%8==0:
            vwait(per*(ks//8)+pre-1); e("s_barrier")
            if sti is not None: stamp(e,sti+ks//8,40,3,1,vt=(14,15))
        b=base+st*(ks%D)
        for mt in range(2):
            for u in range(2):
                e(f"ds_read_b64_tr_b16 {vr(b+4*mt+2*u,2)}, v{vT0+mt} offset:{ks*2048+u*512}")
        if kv:
            for u in range(2): e(f"ds_read_b64_tr_b16 {vr(b+8+2*u,2)}, v{vKV} offset:{ks*512+u*128}")
    for ks in range(L): reads(ks)
    for ks in range(32):
        ahead=min(L-1,31-ks)
        if seg:
            if ks%4==0: vwait(per*(ks//8)+pre+ks%8+3); xpose4(e,ks,(16,20))
        else: vwait(per*(ks//8)+pre+ks%8)
        e(f"s_waitcnt lgkmcnt({ahead*nr})")
        b=base+st*(ks%D); p=vr(P0+4*ks,4)
        for mt in range(2):
            a=vr(ACC+16*mt,16); c=a if ks else '0'; s=vr(b+4*mt,4)
            e(f"{MF32} {a}, {p if p_is_a else s}, {s if p_is_a else p}, {c}")
        if kv:
            a=vr(ACC+32,16); c=a if ks else '0'; s=vr(b+8,4)
            e(f"{MF32} {a}, {s if kv=='K' else p}, {p if kv=='K' else s}, {c}")
        if ks+L<32: reads(ks+L)
        issue(PRE*per+((ks+1)*per+7)//8)
def store_acc(e,acc,scale,srd_,voff,soff,off,tmp):
    if scale is not None:
        for i in range(16): e(f"v_mul_f32 v{acc+i}, {scale}, v{acc+i}")
    for i in range(8): e(f"v_cvt_pk_bf16_f32 v{tmp+i}, v{acc+2*i}, v{acc+2*i+1}")
    for j in range(2): e(f"buffer_store_dwordx4 {vr(tmp+4*j,4)}, v{voff}, {sr(srd_,4)}, {soff} offen offset:{off+32*j}")
def proj(e,pre,is_q):
    s_dma_voff(e,10); tr_addrs(e,True)
    if is_q: seg128_addr(e,vPO,10)
    else: e(f"v_lshlrev_b32 v{vPO}, 4, v{vL}")
    e(f"""s_lshl_b32 s6, s4, 2
    s_add_u32 s6, s6, s{sW}
    s_lshl_b32 s44, s6, 15
    s_lshl_b32 s45, s5, 7
    s_lshl_b32 s53, s4, 1
    s_add_u32 s53, s53, s5
    s_and_b32 s53, s53, {3 if ROT else 0}""")
    stamp_init(e)
    Ld=load_list(e,1024,not is_q,is_q,45,44); pre_loads(e,Ld)
    stamp(e,0 if is_q else 20,40,3,1,vt=(14,15))
    if is_q:
        e(f"""s_and_b32 s7, s5, 3
        s_cmp_eq_u32 s7, s{sW}
        s_cbranch_scc0 {pre}_plain
        s_cmp_lt_u32 s5, 4
        s_cbranch_scc0 {pre}_v""")
        main_tr(e,False,Ld,'K',True)
        e("s_nop 7\ns_nop 7")
        for i in range(4): e(f"v_cvt_pk_bf16_f32 v{16+i}, v{ACC+32+2*i}, v{ACC+33+2*i}")
        e(f"""v_lshlrev_b32 v{vA}, 4, v{vL}
        s_lshl_b32 s46, s6, 10
        buffer_store_dwordx4 v[16:19], v{vA}, {sr(SRD_Y,4)}, s46 offen
        s_branch {pre}_epi
        {pre}_v:""")
        main_tr(e,False,Ld,'V',True)
        e("s_nop 7\ns_nop 7")
        for i in range(8): e(f"v_cvt_pk_bf16_f32 v{16+i}, v{ACC+32+2*i}, v{ACC+33+2*i}")
        e(f"""v_lshlrev_b32 v{vA}, 4, v{vN}
        v_lshl_or_b32 v{vA}, v{vH}, 8, v{vA}
        v_cmp_gt_u32 vcc, 16, v{vN}
        s_lshl_b32 s46, s6, 10
        s_add_u32 s46, s46, 0x10000
        s_and_saveexec_b64 s[48:49], vcc
        buffer_store_dwordx4 v[16:19], v{vA}, {sr(SRD_Y,4)}, s46 offen
        buffer_store_dwordx4 v[20:23], v{vA}, {sr(SRD_Y,4)}, s46 offen offset:512
        s_mov_b64 exec, s[48:49]
        s_branch {pre}_epi
        {pre}_plain:""")
    main_tr(e,False,Ld,None,is_q,1 if is_q else 21)
    e(f"{pre}_epi:")
    if is_q:
        e(f"s_add_u32 s44, s44, s45\ns_mov_b32 s47, {fhex(0.25*1.4426950408889634)}\nv_lshlrev_b32 v{vA}, 4, v{vH}\nv_lshl_or_b32 v{vST}, v{vN}, 10, v{vA}\ns_nop 7\ns_nop 3")
        vo=vST
    else:
        e(f"""s_lshl_b32 s44, s44, 1
        s_add_u32 s44, s44, s45
        v_lshlrev_b32 v{vA}, 4, v{vH}
        v_lshl_or_b32 v{vST}, v{vN}, 11, v{vA}
        s_nop 7\ns_nop 3""")
        vo=vST
    stamp(e,5 if is_q else 25,40,3,1,vt=(14,15))
    for mt in range(2): store_acc(e,ACC+16*mt,'s47' if is_q else None,SRD_O,vo,'s44',64*mt,32+8*mt)
    if STAMP: e("s_waitcnt vmcnt(0)")
    stamp(e,6 if is_q else 26,40,3,1,vt=(14,15)); stamp(e,7 if is_q else 27,40,3,1,True,vt=(14,15))
    wg_end(e,0 if is_q else 2)
    e("s_endpgm")
```

```python
from gen_common import *
from gen_gemm import *
def trig8(e,dst,vA0,vS,offs,fn,tmp,neg=None):
    cst={1:'1.0',2:'2.0',4:'4.0'}
    for j,o in enumerate(offs):
        if o==0: e(f"{fn} v{tmp+j}, v{vA0}")
        else:
            if o not in cst: e(f"s_mov_b32 s60, {fhex(float(o))}")
            e(f"v_fma_f32 v{tmp+j}, v{vS}, {cst.get(o,'s60')}, v{vA0}\n{fn} v{tmp+j}, v{tmp+j}")
    e("s_nop 0")
    for i in range(4): e(f"v_cvt_pk_bf16_f32 v{dst+i}, v{tmp+2*i}, v{tmp+2*i+1}")
    if neg is not None:
        for i in range(4): e(f"v_xor_b32 v{neg+i}, 0x80008000, v{dst+i}")
def k1(e):
    header(e,"k1_kernel")
    e(f"""s_cmp_gt_u32 s2, 256
    s_cbranch_scc1 K1_exit
    s_load_dwordx8 s[64:71], s[0:1], 0
    s_load_dwordx2 s[72:73], s[0:1], 40
    s_load_dwordx4 s[80:83], s[0:1], 48
    s_load_dwordx2 s[78:79], s[0:1], 80""")
    wg_start(e)
    prolog_ids(e)
    e(f"""s_and_b32 s6, s2, 7
    s_lshr_b32 s7, s2, 3
    s_and_b32 s4, s7, 1
    s_lshl_b32 s6, s6, 1
    s_add_u32 s4, s4, s6
    s_bfe_u32 s5, s7, 0x30001
    s_waitcnt lgkmcnt(0)
    s_cmp_eq_u32 s2, 256
    s_cbranch_scc1 K1_tab
    s_cmp_ge_u32 s2, 128
    s_cbranch_scc1 K1_b""")
    srd(e,SRD_P,64,0,2*MB); srd(e,SRD_S,66,0,512*1024); srd(e,SRD_O,78,WS_Q,2*MB); srd(e,SRD_Y,78,WS_KF,131072)
    srd(e,SRD_X,68,0,16384)
    e(f"s_cmp_lt_u32 s5, 4\ns_cbranch_scc1 K1_k\ns_mov_b32 s{SRD_X}, s70\ns_mov_b32 s{SRD_X+1}, s71\nK1_k:")
    proj(e,"K1A",True)
    e("K1_b:")
    srd(e,SRD_P,72,0,2*MB); srd(e,SRD_O,78,WS_YT,2*MB)
    srd(e,SRD_S,80,0,2048*514); srd(e,SRD_X,82,0,2048*514); srd(e,SRD_Y,78,WS_WT,257*8192)
    WJ=[20,24,28,60]
    e(f"""s_sub_u32 s7, s2, 128
    s_lshl_b32 s7, s7, 2
    s_add_u32 s7, s7, s{sW}
    s_and_b32 s50, s7, 63
    s_lshr_b32 s51, s7, 6
    s_lshl_b32 s52, s51, 8
    s_add_u32 s52, s52, s50
    s_mul_i32 s52, s52, 514
    v_lshlrev_b32 v58, 1, v{vL}
    v_mul_u32_u24 v59, {64*514}, v{vL}""")
    for i in range(4):
        for j in range(4):
            e(f"buffer_load_ushort v{WJ[j]+i}, v58, {sr(SRD_S,4)}, s52 offen offset:{128*j}")
            e(f"buffer_load_ushort v{ACC+4*j+i}, v58, {sr(SRD_X,4)}, s52 offen offset:{128*j}")
        e(f"s_add_u32 s52, s52, {64*514}" if i<3 else f"s_sub_u32 s52, s52, {3*64*514}")
    e(f"""s_mov_b64 exec, 15
    buffer_load_ushort v56, v59, {sr(SRD_S,4)}, s52 offen offset:512
    buffer_load_ushort v{ACC+16}, v59, {sr(SRD_X,4)}, s52 offen offset:512
    s_mov_b64 exec, -1
    s_lshr_b32 s52, s50, 4
    s_lshl_b32 s52, s52, 11
    s_and_b32 s50, s50, 15
    s_lshl_b32 s50, s50, 4
    s_add_u32 s52, s52, s50
    s_lshl_b32 s51, s51, 8
    s_add_u32 s52, s52, s51
    v_lshlrev_b32 v57, 13, v{vL}""")
    seg128_addr(e,vPO,15,True)
    e(f"""s_lshl_b32 s6, s4, 2
    s_add_u32 s6, s6, s{sW}
    s_and_b32 s44, s6, 1
    s_lshl_b32 s44, s44, 20
    s_lshr_b32 s45, s6, 1
    s_lshl_b32 s45, s45, 10
    s_add_u32 s44, s44, s45""")
    XL=[]
    e(f"s_lshl_b32 s53, s5, 1\ns_and_b32 s53, s53, 0")
    for j in range(4):
        for hf in range(2):
            for u in range(4):
                k=4*j+u+16*hf
                XL.append(f"s_add_u32 s55, s44, {((u>>1)*16+(u&1)*4)<<15}\nbuffer_load_dwordx4 {vr(P0+4*k,4)}, v{vPO}, {sr(SRD_P,4)}, s55 offen offset:{hf*512+j*128}")
    NX=8
    for x in XL[:NX]: e(x)
    for nt in range(2):
        e(f"""s_lshl_b32 s7, s5, 6
        s_add_u32 s7, s7, {32*nt}
        v_add_u32 v{vA}, s7, v{vN}
        v_lshrrev_b32 v{vB}, 1, v{vA}
        v_and_b32 v{vC}, 1, v{vA}
        v_cmp_eq_u32 vcc, 1, v{vA}
        v_mov_b32 v{vD}, 0x100
        v_cvt_f32_u32 v{vC}, v{vC}
        v_cndmask_b32 v{vB}, v{vB}, v{vD}, vcc
        v_mul_f32 v{vC}, 0x3e800000, v{vC}
        v_cndmask_b32 v{16+nt}, v{vC}, 0, vcc
        v_cvt_f32_u32 v{14+nt}, v{vB}
        v_mul_f32 v{14+nt}, {fhex(1/512)}, v{14+nt}
        v_lshlrev_b32 v{vB}, 31, v{vB}
        v_or_b32 v{18+nt}, 1.0, v{vB}""")
    e(f"""s_lshl_b32 s56, s53, 1
    s_add_u32 s56, s56, s{sW}
    s_lshl_b32 s7, s{sW}, 11
    v_lshl_add_u32 v{vT1}, v{vL}, 4, s7
    v_lshlrev_b32 v{vT0}, 4, v{vL}""")
    for c in range(4):
        e(f"s_add_u32 s7, s56, {4*c}\ns_and_b32 s7, s7, 15\ns_lshl_b32 s7, s7, 4\nv_lshl_add_u32 v0, v{vH}, 3, s7\nv_cvt_f32_u32 v0, v0")
        for nt in range(2):
            e(f"v_fma_f32 v8, v{14+nt}, v0, v{16+nt}\nv_fract_f32 v8, v8")
            tb=32+12*nt
            trig8(e,tb+8,8,14+nt,range(8),"v_cos_f32",tb)
            e(f"ds_write_b128 v{vT1}, {vr(tb+8,4)} offset:{c*8192+nt*1024}")
            q=2*c+nt
            for x in XL[NX+3*q:NX+3*q+3]: e(x)
    e("s_waitcnt vmcnt(32)")
    for j in range(4):
        for i in range(4): e(f"v_lshl_or_b32 v{WJ[j]+i}, v{ACC+4*j+i}, 16, v{WJ[j]+i}")
    e(f"v_lshl_or_b32 v56, v{ACC+16}, 16, v56")
    e("s_waitcnt lgkmcnt(0)\ns_barrier")
    D=3;L=2
    def reads(ks):
        for nt in range(2): e(f"ds_read_b128 {vr(32+8*(ks%D)+4*nt,4)}, v{vT0} offset:{ks*2048+nt*1024}")
    for ks in range(L): reads(ks)
    ns=0
    for ks in range(16):
        if ks%4==0:
            e(f"s_waitcnt vmcnt({28-2*ks+ns})"); xpose4(e,ks,(10,14))
            e(f"s_waitcnt vmcnt({24-2*ks+ns})"); xpose4(e,ks+16,(10,14)); e("s_nop 0")
        e(f"s_waitcnt lgkmcnt({2*min(L-1,15-ks)})")
        if 10<=ks<14:
            e(f"buffer_store_dwordx4 {vr(WJ[ks-10],4)}, v57, {sr(SRD_Y,4)}, s52 offen\ns_add_u32 s52, s52, {64*8192}"); ns+=1
        if ks==14:
            e(f"v_lshlrev_b32 v57, 2, v{vL}\ns_mov_b64 exec, 15\nbuffer_store_dword v56, v57, {sr(SRD_Y,4)}, s52 offen\ns_mov_b64 exec, -1"); ns+=1
        for hf in range(2):
            for nt in range(2):
                a=vr(ACC+16*nt+32*hf,16)
                e(f"{MF32} {a}, {vr(P0+4*(ks+16*hf),4)}, {vr(32+8*(ks%D)+4*nt,4)}, {a if ks else 0}")
        if ks+L<16: reads(ks+L)
    e(f"""v_lshlrev_b32 v{vA}, 4, v{vH}
    v_lshl_or_b32 v{vST}, v{vN}, 12, v{vA}
    s_lshl_b32 s44, s5, 18
    s_lshl_b32 s45, s6, 6
    s_add_u32 s44, s44, s45
    s_add_u32 s45, s44, 0x20000
    s_nop 7""")
    for nt in range(2):
        for i in range(16): e(f"v_fma_f32 v{ACC+16*nt+i}, v{ACC+32+16*nt+i}, v{18+nt}, v{ACC+16*nt+i}")
        store_acc(e,ACC+16*nt,None,SRD_O,vST,f"s{44+nt}",0,32+8*nt)
    wg_end(e,0)
    e("s_endpgm")
    e("K1_tab:")
    srd(e,SRD_O,78,WS_TB,4*26*1024)
    R=14;G=15;A64=16;A32=18;F=20
    e(f"""v_and_b32 v{R}, 15, v{vL}
    v_lshrrev_b32 v{G}, 4, v{vL}
    v_lshlrev_b32 v{vST}, 4, v{vL}
    s_mul_i32 s44, s{sW}, {26*1024}
    s_lshr_b32 s5, s{sW}, 1
    s_and_b32 s4, s{sW}, 1
    s_lshl_b32 s6, s5, 5
    v_and_b32 v{vA}, 12, v{R}
    v_and_b32 v{vB}, 3, v{R}
    v_lshl_add_u32 v{vA}, v{vA}, 1, v{vB}
    v_add_u32 v{vA}, s6, v{vA}
    v_cvt_f32_u32 v{A64}, v{vA}
    v_add_f32 v{A64+1}, 4.0, v{A64}
    v_cvt_f32_u32 v{A32}, v{R}
    v_add_f32 v{A32+1}, {fhex(16.0)}, v{A32}
    v_cvt_f32_u32 v{F}, v{G}""")
    cnt=[0]
    def st(reg):
        e(f"buffer_store_dwordx4 {vr(reg,4)}, v{vST}, {sr(SRD_O,4)}, s44 offen\ns_add_u32 s44, s44, 1024"); cnt[0]+=1
    rb=[64]
    def nreg(n):
        r=rb[0]; rb[0]+=n; return r
    for t in range(2):
        for ks in range(2):
            e(f"""v_mul_f32 v21, {fhex(1/64)}, v{A64+t}
            v_mul_f32 v22, {fhex(8.0)}, v{F}
            v_add_f32 v22, {fhex(32.0*ks)}, v22
            v_mul_f32 v22, v22, v21
            v_fract_f32 v22, v22""")
            c=nreg(12)
            trig8(e,c,22,21,range(8),"v_cos_f32",32); trig8(e,c+4,22,21,range(8),"v_sin_f32",40,c+8)
            st(c);st(c+4);st(c+8)
    for t in range(2):
        e(f"""v_mul_f32 v21, {fhex(1/32)}, v{A32+t}
        v_mul_f32 v22, 4.0, v{F}
        v_mul_f32 v22, v22, v21
        v_fract_f32 v22, v22""")
        c=nreg(12); o=[0,1,2,3,16,17,18,19]
        trig8(e,c,22,21,o,"v_cos_f32",32); trig8(e,c+4,22,21,o,"v_sin_f32",40,c+8)
        st(c);st(c+4);st(c+8)
    for tw in range(2):
        e(f"""s_lshl_b32 s6, s{4 if tw==0 else sW}, 4
        v_lshl_add_u32 v23, v{G}, 2, s6
        v_cvt_f32_u32 v23, v23""")
        for t in range(2):
            e(f"v_mul_f32 v21, {fhex(1/2048)}, v{(A64 if tw==0 else A32)+t}\nv_mul_f32 v22, v21, v23")
            c=nreg(8)
            for i in range(4):
                e(f"v_cos_f32 v{c+i}, v22\nv_sin_f32 v{c+4+i}, v22")
                if i<3: e("v_add_f32 v22, v22, v21")
            if tw==1:
                e("s_nop 0")
                for i in range(8): e(f"v_mul_f32 v{c+i}, {fhex(1/2048)}, v{c+i}")
            e("s_nop 0");st(c);st(c+4)
    assert cnt[0]==26
    wg_end(e,0)
    e("K1_exit:\ns_endpgm")
def k3(e):
    header(e,"k3_kernel")
    e(f"""s_cmp_ge_u32 s2, 256
    s_cbranch_scc1 K3_exit
    s_load_dwordx2 s[66:67], s[0:1], 32
    s_load_dwordx2 s[76:77], s[0:1], 64
    s_load_dwordx2 s[78:79], s[0:1], 80""")
    wg_start(e)
    prolog_ids(e)
    e(f"""s_and_b32 s6, s2, 7
    s_lshr_b32 s7, s2, 3
    s_waitcnt lgkmcnt(0)""")
    srd(e,SRD_O,76,0,4*MB)
    e(f"""s_cmp_ge_u32 s2, 128
    s_cbranch_scc1 K3_b
    s_and_b32 s4, s7, 1
    s_lshl_b32 s6, s6, 1
    s_add_u32 s4, s4, s6
    s_bfe_u32 s5, s7, 0x30001""")
    srd(e,SRD_P,78,WS_O,2*MB); srd(e,SRD_S,66,0,512*1024)
    proj(e,"K3A",False)
    e(f"""K3_b:
    s_and_b32 s4, s7, 3
    s_lshl_b32 s6, s6, 2
    s_add_u32 s4, s4, s6
    s_bfe_u32 s5, s7, 0x20002
    s_lshl_b32 s5, s5, 2
    s_add_u32 s5, s5, s{sW}""")
    srd(e,SRD_P,78,WS_G,512*1024); srd(e,SRD_S,78,WS_ZT,2*MB)
    s_dma_voff(e,12); tr_addrs(e,False)
    e(f"""v_lshlrev_b32 v{vPO}, 4, v{vL}
    s_lshl_b32 s44, s5, 15
    s_lshl_b32 s45, s4, 7
    s_lshr_b32 s53, s5, 2
    s_add_u32 s53, s53, s4
    s_and_b32 s53, s53, {3 if ROT else 0}""")
    Ld=load_list(e,4096,True,False,45,44); pre_loads(e,Ld)
    main_tr(e,True,Ld,None,False)
    e(f"""v_lshlrev_b32 v{vA}, 4, v{vH}
    v_lshl_or_b32 v{vST}, v{vN}, 16, v{vA}
    s_lshl_b32 s44, s4, 11
    s_lshl_b32 s45, s5, 6
    s_add_u32 s44, s44, s45
    s_add_u32 s44, s44, 1024
    s_add_u32 s45, s44, {2*MB}
    s_nop 7""")
    for nt in range(2): store_acc(e,ACC+16*nt,None,SRD_O,vST,f"s{44+nt}",0,32+8*nt)
    wg_end(e,2)
    e("K3_exit:\ns_endpgm")
```

```python
from gen_common import *
L_V=65536; L_ONE=131072; L_E1=135168; L_E2=145408; L_END=154624
def attn(e):
    Q=4; VA=8; KA=9; VS=10; S=[16,32]; O=48; P=64; KB=[72,76]; VB=[80,88]
    SQ=8; SK=12; SO=16
    srd(e,SQ,78,WS_Q,2*MB); srd(e,SK,78,WS_KF,131072); srd(e,SO,78,WS_O,2*MB)
    e(f"""v_lshlrev_b32 v11, 4, v2
    v_lshl_or_b32 v11, v3, 5, v11
    s_lshl_b32 s6, s2, 3
    s_add_u32 s6, s6, s3
    s_lshl_b32 s6, s6, 10
    buffer_load_dwordx4 {vr(Q,4)}, v11, {sr(SQ,4)}, s6 offen
    v_lshlrev_b32 v{KA}, 4, v1
    s_lshl_b32 s40, s3, 10""")
    def chunk():
        e(f"""s_mov_b32 m0, s40
        s_add_u32 s41, s40, 0x10000
        buffer_load_dwordx4 v{KA}, {sr(SK,4)}, s40 offen lds
        s_mov_b32 m0, s41
        s_add_u32 s40, s40, 8192
        buffer_load_dwordx4 v{KA}, {sr(SK,4)}, s41 offen lds""")
    for c in range(3): chunk()
    e(f"""v_mov_b32 v12, 0x3f803f80
    v_mov_b32 v13, 0x3f803f80
    s_lshl_b32 s7, s3, 9
    s_add_u32 s7, s7, {L_ONE}
    v_lshl_add_u32 v14, v1, 3, s7
    ds_write_b64 v14, v[12:13]
    v_lshlrev_b32 v14, 4, v3
    v_lshl_or_b32 v14, v2, 8, v14
    v_add_u32 v14, {L_V}, v14
    v_cmp_gt_u32 vcc, 16, v3
    v_mov_b32 v15, {L_ONE}
    v_mov_b32 v12, 0x1000
    v_cndmask_b32 v{VA}, v15, v14, vcc
    v_cndmask_b32 v{VS}, 0, v12, vcc
    s_waitcnt vmcnt(4) lgkmcnt(0)
    s_barrier""")
    def rdK(t): e(f"ds_read_b128 {vr(KB[t&1],4)}, v{KA} offset:{t*1024}")
    def rdV(t):
        if t and t%4==0: e(f"v_add_u32 v{VA}, v{VA}, v{VS}")
        for s in range(2): e(f"ds_read_b128 {vr(VB[t&1]+4*s,4)}, v{VA} offset:{(t&3)*1024+s*512}")
    def qk(t): e(f"{MF32} {vr(S[t&1],16)}, {vr(KB[t&1],4)}, {vr(Q,4)}, 0")
    def pv(t,s): e(f"{MF32} {vr(O,16)}, {vr(VB[t&1]+4*s,4)}, {vr(P+4*s,4)}, {vr(O,16) if (t or s) else 0}")
    stamp(e,8,100,3,0)
    rdK(0); rdK(1); rdV(0)
    e("s_waitcnt lgkmcnt(3)"); qk(0); e("s_nop 7\ns_nop 3")
    for t in range(64):
        s=S[t&1]
        ex=lambda i: e(f"v_exp_f32 v{s+i}, v{s+i}")
        cv=lambda i: e(f"v_cvt_pk_bf16_f32 v{P+i}, v{s+2*i}, v{s+2*i+1}")
        if (t+2)%8==0 and t+2<64:
            c=(t+2)//8
            e(f"s_waitcnt vmcnt({2 if c<7 else 0}) lgkmcnt(0)\ns_barrier")
            if c+2<8: chunk()
        else: e("s_waitcnt lgkmcnt(0)")
        if t%8==7: stamp(e,9+t//8,100,3,0)
        if t+1<64: qk(t+1)
        if t+2<64: rdK(t+2)
        for i in range(4): ex(i)
        if t: pv(t-1,1)
        if t+1<64: rdV(t+1)
        cv(0);ex(4);ex(5);cv(1);ex(6);ex(7);cv(2);ex(8);cv(3);ex(9);ex(10)
        pv(t,0)
        ex(11);cv(4);ex(12);ex(13);cv(5);ex(14);ex(15);cv(6);cv(7)
    e("s_nop 1"); pv(63,1)
    e(f"""s_mov_b32 s42, {fhex(2.0**-40)}
    s_mov_b32 s43, {fhex(2.0**40)}
    s_nop 7
    s_nop 3
    v_cmp_le_f32 vcc, s42, v{O+8}
    v_cmp_ge_f32 s[44:45], s43, v{O+8}
    s_and_b64 vcc, vcc, s[44:45]
    s_cmp_eq_u64 vcc, -1
    s_cbranch_scc0 K2_fb
    K2_fin:
    v_rcp_f32 v12, v{O+8}
    s_nop 0""")
    for i in range(8): e(f"v_mul_f32 v{O+i}, v12, v{O+i}")
    for i in range(4): e(f"v_cvt_pk_bf16_f32 v{P+i}, v{O+2*i}, v{O+2*i+1}")
    e(f"""s_and_b32 s7, s6, 0x7c00
    s_andn2_b32 s6, s6, 0x7fff
    s_lshr_b32 s7, s7, 6
    s_add_u32 s6, s6, s7
    v_lshlrev_b32 v11, 5, v11
    buffer_store_dwordx4 {vr(P,4)}, v11, {sr(SO,4)}, s6 offen""")
    stamp(e,17,100,3,0); stamp(e,18,100,3,0,True); wg_end(e,1); e("s_endpgm")
    e(f"""K2_fb:
    v_mov_b32 v12, 0xff800000
    v_mov_b32 v13, v{KA}
    s_mov_b32 s46, 64
    K2_fb1:
    ds_read_b128 {vr(KB[0],4)}, v13
    v_add_u32 v13, 0x400, v13
    s_waitcnt lgkmcnt(0)
    {MF32} {vr(S[0],16)}, {vr(KB[0],4)}, {vr(Q,4)}, 0
    s_nop 7
    s_nop 7""")
    for i in range(8): e(f"v_max3_f32 v12, v12, v{S[0]+2*i}, v{S[0]+2*i+1}")
    e(f"""s_sub_u32 s46, s46, 1
    s_cmp_lg_u32 s46, 0
    s_cbranch_scc1 K2_fb1
    v_xor_b32 v13, 32, v1
    v_lshlrev_b32 v13, 2, v13
    ds_bpermute_b32 v13, v13, v12
    s_waitcnt lgkmcnt(0)
    v_max_f32 v12, v12, v13""")
    for i in range(16): e(f"v_sub_f32 v{S[1]+i}, 0, v12\nv_mov_b32 v{O+i}, 0")
    e(f"""v_mov_b32 v13, v{KA}
    v_cndmask_b32 v{VA}, v15, v14, s[48:49]
    v_lshrrev_b32 v{VS}, 2, v{VS}
    s_mov_b32 s46, 64
    K2_fb2:
    ds_read_b128 {vr(KB[0],4)}, v13
    ds_read_b128 {vr(VB[0],4)}, v{VA}
    ds_read_b128 {vr(VB[0]+4,4)}, v{VA} offset:512
    v_add_u32 v13, 0x400, v13
    v_add_u32 v{VA}, v{VA}, v{VS}
    s_waitcnt lgkmcnt(0)
    {MF32} {vr(S[0],16)}, {vr(KB[0],4)}, {vr(Q,4)}, {vr(S[1],16)}
    s_nop 7
    s_nop 7""")
    for i in range(16): e(f"v_exp_f32 v{S[0]+i}, v{S[0]+i}")
    e("s_nop 0")
    for i in range(8): e(f"v_cvt_pk_bf16_f32 v{P+i}, v{S[0]+2*i}, v{S[0]+2*i+1}")
    e("s_nop 1")
    for s in range(2): e(f"{MF32} {vr(O,16)}, {vr(VB[0]+4*s,4)}, {vr(P+4*s,4)}, {vr(O,16)}")
    e(f"""s_sub_u32 s46, s46, 1
    s_cmp_lg_u32 s46, 0
    s_cbranch_scc1 K2_fb2
    s_nop 7
    s_nop 7
    s_branch K2_fin""")
def fft(e):
    D64=16; D32=64; TW1=88; TW2=104; X=120; A=136; T=152
    R=4; G=5; vX=6; vE1w=7; vE1r=8; vE2w=9; vE2r=10; vW=11; vZ=12
    SY=8; SYI=12; SZ=16; SZI=20; ST=24; SWR=28; SWI=32; SG=36
    C64=lambda t,ks,k: vr(D64+12*(2*t+ks)+4*k,4)
    C32=lambda t,k: vr(D32+12*t+4*k,4)
    srd(e,SY,78,WS_YT,2*MB); srd(e,SYI,78,WS_YT,2*MB); srd(e,SZ,78,WS_ZT,2*MB); srd(e,SZI,78,WS_ZT,2*MB)
    srd(e,ST,78,WS_TB,4*26*1024); srd(e,SWR,78,WS_WT,257*8192); srd(e,SG,78,WS_G,512*1024)
    e(f"""s_sub_u32 s3, s3, 8
    s_and_b32 s4, s3, 1
    s_lshr_b32 s5, s3, 1
    s_and_b32 s6, s2, 7
    s_lshl_b32 s6, s6, 5
    s_lshr_b32 s7, s2, 3
    s_add_u32 s6, s6, s7
    s_lshl_b32 s40, s6, 13
    s_add_u32 s41, s40, 4096
    s_lshl_b32 s42, s6, 13
    s_lshl_b32 s7, s3, 11
    s_add_u32 s42, s42, s7
    s_cmp_eq_u32 s6, 0
    s_cselect_b32 s{SYI+2}, 0, s{SYI+2}
    s_cselect_b32 s{SZI+2}, 0, s{SZI+2}
    s_cselect_b32 s47, 1, 0
    v_and_b32 v{R}, 15, v1
    v_lshrrev_b32 v{G}, 4, v1
    s_lshl_b32 s7, s4, 11
    v_lshlrev_b32 v13, 4, v{G}
    v_lshl_add_u32 v{vX}, v{R}, 7, v13
    v_add_u32 v{vX}, s7, v{vX}""")
    def ldx():
        for p in range(2):
            for ks in range(2): e(f"buffer_load_dwordx4 {vr(X+8*p+4*ks,4)}, v{vX}, {sr(SYI if p else SY,4)}, s{40+p} offen offset:{64*ks}")
    WB=X+8
    def ldw():
        for t in range(2): e(f"buffer_load_dwordx4 {vr(WB+4*t,4)}, v14, {sr(SWR,4)}, s42 offen offset:{1024*t}")
    e(f"s_mul_i32 s43, s3, {26*1024}\nv_lshlrev_b32 v14, 4, v1")
    e(f"""s_lshl_b32 s7, s5, 6
    v_add_u32 v{vZ}, s7, v{vX}
    v_and_b32 v15, 12, v{R}
    v_and_b32 v{vW}, 3, v{R}
    v_lshl_add_u32 v15, v15, 1, v{vW}
    s_lshl_b32 s7, s5, 5
    v_add_u32 v15, s7, v15
    v_mul_u32_u24 v15, 80, v15
    s_lshl_b32 s7, s4, 3
    s_add_u32 s7, s7, {L_E1}
    v_add3_u32 v{vE1w}, v15, v13, s7
    s_lshl_b32 s7, s3, 4
    v_add_u32 v15, s7, v{R}
    v_mul_u32_u24 v{vE1r}, 80, v15
    v_add_u32 v{vE1r}, {L_E1}, v{vE1r}
    v_add_u32 v{vE1r}, v{vE1r}, v13
    v_mul_u32_u24 v15, 144, v{R}
    s_lshl_b32 s7, s3, 5
    s_add_u32 s7, s7, {L_E2}
    v_lshl_add_u32 v{vE2w}, v{G}, 3, s7
    v_add_u32 v{vE2w}, v{vE2w}, v15
    s_mul_i32 s7, s4, {16*144}
    s_add_u32 s7, s7, {L_E2}
    v_add3_u32 v{vE2r}, v15, v13, s7""")
    e(f"""s_cmp_ge_u32 s3, 2
    s_cbranch_scc1 K2_nog
    s_lshl_b32 s7, s2, 1
    s_add_u32 s7, s7, s3
    s_lshl_b32 s44, s7, 10
    s_and_b32 s45, s7, 31
    s_lshr_b32 s7, s7, 5
    s_lshl_b32 s7, s7, 5
    s_lshl_b32 s45, s45, 3""")
    swap23(e,A,3,A+1)
    e(f"""v_add_u32 v{A}, s7, v{A}
    v_cvt_f32_u32 v{A}, v{A}
    v_lshl_add_u32 v{A+1}, v2, 2, s45
    v_cmp_eq_u32 vcc, 0, v{A+1}
    v_cvt_f32_u32 v{A+1}, v{A+1}
    v_mul_f32 v{A+2}, {fhex(1/512)}, v{A}
    v_mul_f32 v{A+3}, v{A+2}, v{A+1}
    v_fract_f32 v{A+3}, v{A+3}
    v_mul_f32 v{A+4}, 0.5, v{A}
    v_mov_b32 v{A+5}, {fhex(1/256)}
    v_mov_b32 v{A+6}, {fhex(1/512)}
    v_cndmask_b32 v{A+6}, v{A+5}, v{A+6}, vcc""")
    for q in range(4):
        e(f"v_add_f32 v{T+2*q+1}, 0x3e800000, v{A+3}")
        if q==0: e(f"v_fract_f32 v{A+4}, v{A+4}\nv_cndmask_b32 v{T+1}, v{T+1}, v{A+4}, vcc")
        e(f"v_cos_f32 v{T+2*q}, v{A+3}\nv_cos_f32 v{T+2*q+1}, v{T+2*q+1}")
        if q<3: e(f"v_add_f32 v{A+3}, v{A+3}, v{A+2}")
    e("s_nop 0")
    for j in range(8): e(f"v_mul_f32 v{T+j}, v{A+6 if j<2 else A+5}, v{T+j}")
    for q in range(4): e(f"v_cvt_pk_bf16_f32 v{T+8+q}, v{T+2*q}, v{T+2*q+1}")
    e(f"""buffer_store_dwordx4 {vr(T+8,4)}, v14, {sr(SG,4)}, s44 offen
    K2_nog:
    s_barrier""")
    ldx()
    order=list(range(12))+list(range(18,22))+list(range(12,18))+list(range(22,26))
    for f in order:
        e(f"s_add_u32 s44, s43, {f*1024}\nbuffer_load_dwordx4 {vr(D64+4*f,4)}, v14, {sr(ST,4)}, s44 offen")
    e("s_barrier\ns_waitcnt vmcnt(10)\nK2_col:")
    def cmul(t,c,s,sign):
        for i in range(4):
            ar=A+4*t+i; ai=A+8+4*t+i
            e(f"v_mul_f32 v{T+4*t+i}, v{ar}, v{c+i}\nv_mul_f32 v{T+8+4*t+i}, v{ai}, v{c+i}")
            e(f"v_fma_f32 v{T+4*t+i}, {'-' if sign>0 else ''}v{ai}, v{s+i}, v{T+4*t+i}")
            e(f"v_fma_f32 v{T+8+4*t+i}, {'' if sign>0 else '-'}v{ar}, v{s+i}, v{T+8+4*t+i}")
    def pack(src):
        for i in range(8): e(f"v_cvt_pk_bf16_f32 v{X+i}, v{src+2*i}, v{src+2*i+1}")
    xr=lambda ks: vr(X+4*ks,4); xi=lambda ks: vr(X+8+4*ks,4)
    ar=lambda t: vr(A+4*t,4); ai=lambda t: vr(A+8+4*t,4)
    for ks in range(2):
        for t in range(2):
            e(f"{MF16} {ar(t)}, {xr(ks)}, {C64(t,ks,0)}, {ar(t) if ks else 0}\n{MF16} {ai(t)}, {xi(ks)}, {C64(t,ks,0)}, {ai(t) if ks else 0}")
        for t in range(2):
            e(f"{MF16} {ar(t)}, {xi(ks)}, {C64(t,ks,1)}, {ar(t)}\n{MF16} {ai(t)}, {xr(ks)}, {C64(t,ks,2)}, {ai(t)}")
    e("s_nop 7")
    ldw()
    for t in range(2): cmul(t,TW1+8*t,TW1+8*t+4,-1)
    pack(T)
    for p in range(2):
        for t in range(2): e(f"ds_write_b64 v{vE1w}, {vr(X+4*p+2*t,2)} offset:{p*5120+t*320}")
    e(f"""s_waitcnt lgkmcnt(0)
    s_barrier
    ds_read_b128 {vr(X,4)}, v{vE1r}
    ds_read_b128 {vr(X+4,4)}, v{vE1r} offset:5120
    s_waitcnt vmcnt(0) lgkmcnt(0)""")
    ur=vr(X,4); ui=vr(X+4,4)
    for t in range(2): e(f"{MF16} {ar(t)}, {C32(t,0)}, {ur}, 0\n{MF16} {ai(t)}, {C32(t,0)}, {ui}, 0")
    for t in range(2): e(f"{MF16} {ar(t)}, {C32(t,1)}, {ui}, {ar(t)}\n{MF16} {ai(t)}, {C32(t,2)}, {ur}, {ai(t)}")
    for i in range(8): e(f"v_lshlrev_b32 v{T+i}, 16, v{WB+i}\nv_and_b32 v{WB+i}, 0xffff0000, v{WB+i}")
    e("s_nop 1")
    for t in range(2):
        for i in range(4):
            a=A+4*t+i; b=A+8+4*t+i; wr=T+4*t+i; wi=WB+4*t+i
            e(f"""v_mul_f32 v13, v{b}, v{wi}
            v_mul_f32 v{wi}, v{a}, v{wi}
            v_fma_f32 v{a}, v{a}, v{wr}, -v13
            v_fma_f32 v{b}, v{b}, v{wr}, v{wi}""")
    pack(A)
    e("s_nop 1")
    for t in range(2): e(f"{MF16} {ar(t)}, {ur}, {C32(t,0)}, 0\n{MF16} {ai(t)}, {ui}, {C32(t,0)}, 0")
    for t in range(2): e(f"{MF16} {ar(t)}, {ui}, {C32(t,2)}, {ar(t)}\n{MF16} {ai(t)}, {ur}, {C32(t,1)}, {ai(t)}")
    e("s_nop 7")
    for t in range(2): cmul(t,TW2+8*t,TW2+8*t+4,1)
    pack(T)
    for p in range(2):
        for t in range(2): e(f"ds_write_b64 v{vE2w}, {vr(X+4*p+2*t,2)} offset:{p*4608+t*16*144}")
    e("s_waitcnt lgkmcnt(0)\ns_barrier")
    for p in range(2):
        for ks in range(2): e(f"ds_read_b128 {vr(X+8*p+4*ks,4)}, v{vE2r} offset:{p*4608+ks*64}")
    e("s_waitcnt lgkmcnt(0)")
    for ks in range(2):
        for t in range(2):
            e(f"{MF16} {ar(t)}, {C64(t,ks,0)}, {xr(ks)}, {ar(t) if ks else 0}\n{MF16} {ai(t)}, {C64(t,ks,0)}, {xi(ks)}, {ai(t) if ks else 0}")
        for t in range(2):
            e(f"{MF16} {ar(t)}, {C64(t,ks,2)}, {xi(ks)}, {ar(t)}\n{MF16} {ai(t)}, {C64(t,ks,1)}, {xr(ks)}, {ai(t)}")
    e("s_nop 7")
    for i in range(8): e(f"v_cvt_pk_bf16_f32 v{T+i}, v{A+2*i}, v{A+2*i+1}")
    e(f"""buffer_store_dwordx4 {vr(T,4)}, v{vZ}, {sr(SZ,4)}, s40 offen
    buffer_store_dwordx4 {vr(T+4,4)}, v{vZ}, {sr(SZI,4)}, s41 offen
    s_cmp_eq_u32 s47, 0
    s_cbranch_scc1 K2_exit
    s_mov_b32 s47, 0
    s_mov_b32 s40, 4096
    s_add_u32 s42, s42, {256*8192}""")
    ldx()
    e("s_waitcnt vmcnt(0)\ns_branch K2_col")
def k2(e):
    header(e,"k2_kernel")
    wg_start(e)
    e(f"""s_cmp_ge_u32 s2, 256
    s_cbranch_scc1 K2_exit
    s_load_dwordx2 s[78:79], s[0:1], 80
    v_lshrrev_b32 v4, 6, v0
    v_and_b32 v1, 63, v0
    v_readfirstlane_b32 s3, v4
    v_lshrrev_b32 v2, 5, v1
    v_and_b32 v3, 31, v1
    v_cmp_gt_u32 s[48:49], 16, v3
    s_waitcnt lgkmcnt(0)
    s_cmp_ge_u32 s3, 8
    s_cbranch_scc1 K2_fft""")
    stamp_init(e)
    attn(e)
    e("K2_fft:")
    fft(e)
    e("K2_exit:\ns_endpgm")
```

```python
from gen_common import *
P0=128; ACC=64; SF=32
vL=1; vH=2; vN=3; vPO=4; vSO=5; vT0=6; vT1=7; vKV=8; vST=9; vA=10; vB=11; vC=12; vD=13
sW=3
SRD_P=8; SRD_S=12; SRD_O=16; SRD_X=20; SRD_Y=24
def prolog_ids(e):
    e(f"""v_lshrrev_b32 v{vA}, 6, v0
    v_and_b32 v{vL}, 63, v0
    v_readfirstlane_b32 s{sW}, v{vA}
    v_lshrrev_b32 v{vH}, 5, v{vL}
    v_and_b32 v{vN}, 31, v{vL}""")
def s_dma_voff(e,rowstride_log2):
    e(f"""v_lshrrev_b32 v{vA}, 2, v{vL}
    v_and_b32 v{vA}, 4, v{vA}
    v_xor_b32 v{vA}, v{vA}, v{vL}
    v_and_b32 v{vA}, 7, v{vA}
    v_lshlrev_b32 v{vA}, 4, v{vA}
    v_lshrrev_b32 v{vB}, 3, v{vL}
    v_lshl_or_b32 v{vSO}, v{vB}, {rowstride_log2}, v{vA}""")
def tr_addrs(e,swap):
    e(f"""v_and_b32 v{vA}, 3, v{vL}""")
    if swap: e(f"""v_lshrrev_b32 v{vB}, 1, v{vA}
    v_and_b32 v{vA}, 1, v{vA}
    v_lshl_or_b32 v{vA}, v{vA}, 1, v{vB}""")
    e(f"""v_lshlrev_b32 v{vA}, 3, v{vA}
    v_bfe_u32 v{vB}, v{vL}, 2, 2
    v_lshl_or_b32 v{vKV}, v{vB}, 5, v{vA}
    v_lshl_or_b32 v{vKV}, v{vH}, 8, v{vKV}
    v_add_u32 v{vKV}, 0x10000, v{vKV}
    v_lshl_or_b32 v{vA}, v{vB}, 7, v{vA}
    v_lshl_or_b32 v{vA}, v{vH}, 10, v{vA}
    v_bfe_u32 v{vB}, v{vL}, 4, 1
    v_lshl_or_b32 v{vA}, v{vB}, 5, v{vA}
    v_bfe_u32 v{vB}, v{vL}, 3, 1
    v_lshl_or_b32 v{vT0}, v{vB}, 6, v{vA}
    v_xor_b32 v{vT1}, 64, v{vT0}""")
def seg128_addr(e,d,rowlog,swap=False):
    e(f"v_and_b32 v{vB}, 7, v{vL}")
    if swap: e(f"v_and_b32 v{vC}, 4, v{vL}\nv_add_u32 v{vB}, v{vB}, v{vC}")
    e(f"""v_bfe_u32 v{vA}, v{vL}, 3, 2
    v_lshlrev_b32 v{vA}, 5, v{vA}
    v_lshl_or_b32 v{vA}, v{vH}, 4, v{vA}
    v_lshl_or_b32 v{d}, v{vB}, {rowlog}, v{vA}""")
def xpose4(e,ks,T):
    R=[P0+4*(ks+q) for q in range(4)]
    for a in range(2):
        for i in range(4): e(f"v_mov_b32_dpp v{T[a]+i}, v{R[2*a]+i} row_ror:8 row_mask:0xf bank_mask:0xf")
    for a in range(2):
        for i in range(4): e(f"v_mov_b32_dpp v{R[2*a]+i}, v{R[2*a+1]+i} row_ror:8 row_mask:0xf bank_mask:0xc")
    for a in range(2):
        for i in range(4): e(f"v_mov_b32_dpp v{R[2*a+1]+i}, v{T[a]+i} quad_perm:[0,1,2,3] row_mask:0xf bank_mask:0x3")
    for a in range(2):
        for i in range(4): e(f"v_permlane16_swap_b32 v{R[a]+i}, v{R[a+2]+i}")
def load_list(e,rowstride,pfrag,kv,sS,sP):
    e(f"s_lshl_b32 s40, s{sW}, 12\ns_mul_i32 s54, s{sW}, {32*rowstride}\ns_add_u32 s54, s54, s{sS}")
    if kv: e(f"s_lshl_b32 s56, s{sW}, 10\ns_add_u32 s43, s56, 0x10000\nv_lshlrev_b32 v{vD}, 4, v{vL}")
    Ld=[]
    for c in range(4):
        hd=(f"s_add_u32 s55, s53, {c}\ns_and_b32 s55, s55, 3\ns_mul_i32 s41, s55, {128*rowstride}\ns_add_u32 s41, s41, s54\n"
            f"s_lshl_b32 s57, s55, {13 if pfrag else 8}\ns_add_u32 s57, s57, s{sP}\n")
        if kv: hd+="s_lshl_b32 s42, s55, 12\ns_add_u32 s42, s42, s56\n"
        for i in range(4):
            Ld.append((hd if i==0 else "")+f"s_mov_b32 m0, s40\ns_add_u32 s40, s40, {1024 if i<3 else 16384-3072}\n"
              f"buffer_load_dwordx4 v{vSO}, {sr(SRD_S,4)}, s41 offen lds"+(f"\ns_add_u32 s41, s41, {8*rowstride}" if i<3 else ""))
        if kv:
            Ld.append(f"s_mov_b32 m0, s43\ns_add_u32 s43, s43, 4096\n"
              f"buffer_load_dwordx4 v{vD}, {sr(SRD_X,4)}, s42 offen lds")
        for k in range(8):
            ks=8*c+k
            if pfrag:
                Ld.append(f"buffer_load_dwordx4 {vr(P0+4*ks,4)}, v{vPO}, {sr(SRD_P,4)}, s57 offen offset:{(ks&3)*1024}"+(f"\ns_add_u32 s57, s57, 4096" if k==3 else ""))
            else:
                Ld.append(f"s_add_u32 s58, s57, {(k&3)*8192}\nbuffer_load_dwordx4 {vr(P0+4*ks,4)}, v{vPO}, {sr(SRD_P,4)}, s58 offen offset:{(k>>2)*128}")
    return Ld
ROT=int(os.environ.get('ROT','7'))
PRE=int(os.environ.get('PRE','2'))
def pre_loads(e,Ld):
    for x in Ld[:PRE*len(Ld)//4]: e(x)
def main_tr(e,p_is_a,Ld,kv,seg,sti=None):
    per=len(Ld)//4; pre=per-8
    D=3 if kv else 4; L=D-1; nr=6 if kv else 4; st=12 if kv else 8
    base=28 if kv else 32
    done=[-1]; iss=[PRE*per]
    def issue(n):
        while iss[0]<min(n,len(Ld)): e(Ld[iss[0]]); iss[0]+=1
    def vwait(pos):
        issue(pos+1)
        if pos>done[0]:
            e(f"s_waitcnt vmcnt({iss[0]-pos-1})"); done[0]=pos
    def reads(ks):
        if ks%8==0:
            vwait(per*(ks//8)+pre-1); e("s_barrier")
            if sti is not None: stamp(e,sti+ks//8,40,3,1,vt=(14,15))
        b=base+st*(ks%D)
        for mt in range(2):
            for u in range(2):
                e(f"ds_read_b64_tr_b16 {vr(b+4*mt+2*u,2)}, v{vT0+mt} offset:{ks*2048+u*512}")
        if kv:
            for u in range(2): e(f"ds_read_b64_tr_b16 {vr(b+8+2*u,2)}, v{vKV} offset:{ks*512+u*128}")
    for ks in range(L): reads(ks)
    for ks in range(32):
        ahead=min(L-1,31-ks)
        if seg:
            if ks%4==0: vwait(per*(ks//8)+pre+ks%8+3); xpose4(e,ks,(16,20))
        else: vwait(per*(ks//8)+pre+ks%8)
        e(f"s_waitcnt lgkmcnt({ahead*nr})")
        b=base+st*(ks%D); p=vr(P0+4*ks,4)
        for mt in range(2):
            a=vr(ACC+16*mt,16); c=a if ks else '0'; s=vr(b+4*mt,4)
            e(f"{MF32} {a}, {p if p_is_a else s}, {s if p_is_a else p}, {c}")
        if kv:
            a=vr(ACC+32,16); c=a if ks else '0'; s=vr(b+8,4)
            e(f"{MF32} {a}, {s if kv=='K' else p}, {p if kv=='K' else s}, {c}")
        if ks+L<32: reads(ks+L)
        issue(PRE*per+((ks+1)*per+7)//8)
def store_acc(e,acc,scale,srd_,voff,soff,off,tmp):
    if scale is not None:
        for i in range(16): e(f"v_mul_f32 v{acc+i}, {scale}, v{acc+i}")
    for i in range(8): e(f"v_cvt_pk_bf16_f32 v{tmp+i}, v{acc+2*i}, v{acc+2*i+1}")
    for j in range(2): e(f"buffer_store_dwordx4 {vr(tmp+4*j,4)}, v{voff}, {sr(srd_,4)}, {soff} offen offset:{off+32*j}")
def proj(e,pre,is_q):
    s_dma_voff(e,10); tr_addrs(e,True)
    if is_q: seg128_addr(e,vPO,10)
    else: e(f"v_lshlrev_b32 v{vPO}, 4, v{vL}")
    e(f"""s_lshl_b32 s6, s4, 2
    s_add_u32 s6, s6, s{sW}
    s_lshl_b32 s44, s6, 15
    s_lshl_b32 s45, s5, 7
    s_add_u32 s53, s4, s5
    s_and_b32 s53, s53, {3 if (ROT&(1 if is_q else 4)) else 0}""")
    stamp_init(e)
    Ld=load_list(e,1024,not is_q,is_q,45,44); pre_loads(e,Ld)
    stamp(e,0 if is_q else 20,40,3,1,vt=(14,15))
    if is_q:
        e(f"""s_and_b32 s7, s5, 3
        s_cmp_eq_u32 s7, s{sW}
        s_cbranch_scc0 {pre}_plain
        s_cmp_lt_u32 s5, 4
        s_cbranch_scc0 {pre}_v""")
        main_tr(e,False,Ld,'K',True)
        e("s_nop 7\ns_nop 7")
        for i in range(4): e(f"v_cvt_pk_bf16_f32 v{16+i}, v{ACC+32+2*i}, v{ACC+33+2*i}")
        e(f"""v_lshlrev_b32 v{vA}, 4, v{vL}
        s_lshl_b32 s46, s6, 10
        buffer_store_dwordx4 v[16:19], v{vA}, {sr(SRD_Y,4)}, s46 offen
        s_branch {pre}_epi
        {pre}_v:""")
        main_tr(e,False,Ld,'V',True)
        e("s_nop 7\ns_nop 7")
        for i in range(8): e(f"v_cvt_pk_bf16_f32 v{16+i}, v{ACC+32+2*i}, v{ACC+33+2*i}")
        e(f"""v_lshlrev_b32 v{vA}, 4, v{vN}
        v_lshl_or_b32 v{vA}, v{vH}, 8, v{vA}
        v_cmp_gt_u32 vcc, 16, v{vN}
        s_lshl_b32 s46, s6, 10
        s_add_u32 s46, s46, 0x10000
        s_and_saveexec_b64 s[48:49], vcc
        buffer_store_dwordx4 v[16:19], v{vA}, {sr(SRD_Y,4)}, s46 offen
        buffer_store_dwordx4 v[20:23], v{vA}, {sr(SRD_Y,4)}, s46 offen offset:512
        s_mov_b64 exec, s[48:49]
        s_branch {pre}_epi
        {pre}_plain:""")
    main_tr(e,False,Ld,None,is_q,1 if is_q else 21)
    e(f"{pre}_epi:")
    if is_q:
        e(f"s_add_u32 s44, s44, s45\ns_mov_b32 s47, {fhex(0.25*1.4426950408889634)}\nv_lshlrev_b32 v{vA}, 4, v{vH}\nv_lshl_or_b32 v{vST}, v{vN}, 10, v{vA}\ns_nop 7\ns_nop 3")
        vo=vST
    else:
        e(f"""s_lshl_b32 s44, s44, 1
        s_add_u32 s44, s44, s45
        v_lshlrev_b32 v{vA}, 4, v{vH}
        v_lshl_or_b32 v{vST}, v{vN}, 11, v{vA}
        s_nop 7\ns_nop 3""")
        vo=vST
    stamp(e,5 if is_q else 25,40,3,1,vt=(14,15))
    for mt in range(2): store_acc(e,ACC+16*mt,'s47' if is_q else None,SRD_O,vo,'s44',64*mt,32+8*mt)
    if STAMP: e("s_waitcnt vmcnt(0)")
    stamp(e,6 if is_q else 26,40,3,1,vt=(14,15)); stamp(e,7 if is_q else 27,40,3,1,True,vt=(14,15))
    wg_end(e,0 if is_q else 2)
    e("s_endpgm")
```

```python
from gen_common import *
from gen_gemm import *
def trig8(e,dst,vA0,vS,offs,fn,tmp,neg=None):
    cst={1:'1.0',2:'2.0',4:'4.0'}
    for j,o in enumerate(offs):
        if o==0: e(f"{fn} v{tmp+j}, v{vA0}")
        else:
            if o not in cst: e(f"s_mov_b32 s60, {fhex(float(o))}")
            e(f"v_fma_f32 v{tmp+j}, v{vS}, {cst.get(o,'s60')}, v{vA0}\n{fn} v{tmp+j}, v{tmp+j}")
    e("s_nop 0")
    for i in range(4): e(f"v_cvt_pk_bf16_f32 v{dst+i}, v{tmp+2*i}, v{tmp+2*i+1}")
    if neg is not None:
        for i in range(4): e(f"v_xor_b32 v{neg+i}, 0x80008000, v{dst+i}")
def k1(e):
    header(e,"k1_kernel")
    e(f"""s_cmp_gt_u32 s2, 259
    s_cbranch_scc1 K1_exit
    s_load_dwordx8 s[64:71], s[0:1], 0
    s_load_dwordx2 s[72:73], s[0:1], 40
    s_load_dwordx4 s[80:83], s[0:1], 48
    s_load_dwordx2 s[78:79], s[0:1], 80""")
    wg_start(e)
    prolog_ids(e)
    e(f"""s_bfe_u32 s6, s2, 0x20001
    s_lshr_b32 s7, s2, 3
    s_and_b32 s4, s7, 3
    s_lshl_b32 s6, s6, 2
    s_add_u32 s4, s4, s6
    s_bfe_u32 s5, s7, 0x30002
    s_waitcnt lgkmcnt(0)
    s_cmp_ge_u32 s2, 256
    s_cbranch_scc1 K1_tab
    s_bitcmp1_b32 s2, 0
    s_cbranch_scc1 K1_b""")
    srd(e,SRD_P,64,0,2*MB); srd(e,SRD_S,66,0,512*1024); srd(e,SRD_O,78,WS_Q,2*MB); srd(e,SRD_Y,78,WS_KF,131072)
    srd(e,SRD_X,68,0,16384)
    e(f"s_cmp_lt_u32 s5, 4\ns_cbranch_scc1 K1_k\ns_mov_b32 s{SRD_X}, s70\ns_mov_b32 s{SRD_X+1}, s71\nK1_k:")
    proj(e,"K1A",True)
    e("K1_b:")
    srd(e,SRD_P,72,0,2*MB); srd(e,SRD_O,78,WS_YT,2*MB)
    srd(e,SRD_S,80,0,2048*514); srd(e,SRD_X,82,0,2048*514); srd(e,SRD_Y,78,WS_WT,257*8192)
    WJ=[20,24,28,60]
    WT1=os.environ.get('WT1','sc0 sc1')
    e(f"""s_lshl_b32 s7, s4, 3
    s_add_u32 s7, s7, s5
    s_and_b32 s59, s7, 1
    s_bfe_u32 s50, s7, 0x30001
    s_lshr_b32 s51, s7, 4
    s_lshl_b32 s52, s51, 7
    s_lshl_b32 s7, s50, 2
    s_add_u32 s52, s52, s7
    s_add_u32 s52, s52, s{sW}
    s_mul_i32 s52, s52, 1028
    s_lshl_b32 s7, s59, 8
    v_lshl_add_u32 v58, v{vL}, 1, s7
    v_and_b32 v59, 3, v{vL}
    v_lshrrev_b32 v57, 2, v{vL}
    v_lshl_or_b32 v59, v59, 6, v57
    v_mul_u32_u24 v59, 514, v59""")
    for p_ in range(2):
        for i in range(4):
            e(f"s_add_u32 s7, s52, {(64*i+p_)*514}")
            for j in range(2):
                e(f"buffer_load_ushort v{WJ[2*p_+j]+i}, v58, {sr(SRD_S,4)}, s7 offen offset:{128*j}")
                e(f"buffer_load_ushort v{ACC+4*(2*p_+j)+i}, v58, {sr(SRD_X,4)}, s7 offen offset:{128*j}")
    e(f"""s_mov_b64 exec, 0xff
    buffer_load_ushort v56, v59, {sr(SRD_S,4)}, s52 offen offset:512
    buffer_load_ushort v{ACC+16}, v59, {sr(SRD_X,4)}, s52 offen offset:512
    s_mov_b64 exec, -1
    s_lshr_b32 s52, s50, 1
    s_lshl_b32 s52, s52, 11
    s_and_b32 s50, s50, 1
    s_lshl_b32 s50, s50, 7
    s_add_u32 s52, s52, s50
    s_lshl_b32 s51, s51, 8
    s_add_u32 s52, s52, s51
    s_lshl_b32 s51, s{sW}, 5
    s_add_u32 s51, s51, s52
    s_add_u32 s51, s51, {256*8192}
    s_lshl_b32 s59, s59, 20
    s_add_u32 s52, s52, s59
    s_lshl_b32 s59, s{sW}, 18
    s_add_u32 s52, s52, s59""")
    seg128_addr(e,vPO,15,True)
    e(f"""s_lshl_b32 s6, s4, 2
    s_add_u32 s6, s6, s{sW}
    s_and_b32 s44, s6, 1
    s_lshl_b32 s44, s44, 20
    s_lshr_b32 s45, s6, 1
    s_lshl_b32 s45, s45, 10
    s_add_u32 s44, s44, s45""")
    XL=[]
    e(f"s_lshl_b32 s53, s5, 1\ns_and_b32 s53, s53, {6 if ROT&2 else 0}")
    for j in range(4):
        for hf in range(2):
            for u in range(4):
                k=4*j+u+16*hf
                hd=f"s_add_u32 s57, s53, {2*j}\ns_and_b32 s57, s57, 7\ns_lshl_b32 s57, s57, 6\ns_add_u32 s57, s57, s44\n" if hf+u==0 else ""
                XL.append(hd+f"s_add_u32 s55, s57, {((u>>1)*16+(u&1)*4)<<15}\nbuffer_load_dwordx4 {vr(P0+4*k,4)}, v{vPO}, {sr(SRD_P,4)}, s55 offen offset:{hf*512}")
    NX=8
    for x in XL[:NX]: e(x)
    for nt in range(2):
        e(f"""s_lshl_b32 s7, s5, 6
        s_add_u32 s7, s7, {32*nt}
        v_add_u32 v{vA}, s7, v{vN}
        v_lshrrev_b32 v{vB}, 1, v{vA}
        v_and_b32 v{vC}, 1, v{vA}
        v_cmp_eq_u32 vcc, 1, v{vA}
        v_mov_b32 v{vD}, 0x100
        v_cvt_f32_u32 v{vC}, v{vC}
        v_cndmask_b32 v{vB}, v{vB}, v{vD}, vcc
        v_mul_f32 v{vC}, 0x3e800000, v{vC}
        v_cndmask_b32 v{16+nt}, v{vC}, 0, vcc
        v_cvt_f32_u32 v{14+nt}, v{vB}
        v_mul_f32 v{14+nt}, {fhex(1/512)}, v{14+nt}
        v_lshlrev_b32 v{vB}, 31, v{vB}
        v_or_b32 v{18+nt}, 1.0, v{vB}""")
    e(f"""s_lshl_b32 s56, s53, 1
    s_add_u32 s56, s56, s{sW}
    s_lshl_b32 s7, s{sW}, 11
    v_lshl_add_u32 v{vT1}, v{vL}, 4, s7
    v_lshlrev_b32 v{vT0}, 4, v{vL}""")
    for c in range(4):
        e(f"s_add_u32 s7, s56, {4*c}\ns_and_b32 s7, s7, 15\ns_lshl_b32 s7, s7, 4\nv_lshl_add_u32 v0, v{vH}, 3, s7\nv_cvt_f32_u32 v0, v0")
        for nt in range(2):
            e(f"v_fma_f32 v8, v{14+nt}, v0, v{16+nt}\nv_fract_f32 v8, v8")
            tb=32+12*nt
            trig8(e,tb+8,8,14+nt,range(8),"v_cos_f32",tb)
            e(f"ds_write_b128 v{vT1}, {vr(tb+8,4)} offset:{c*8192+nt*1024}")
            q=2*c+nt
            for x in XL[NX+3*q:NX+3*q+3]: e(x)
    e("s_waitcnt vmcnt(32)")
    for j in range(4):
        for i in range(4): e(f"v_lshl_or_b32 v{WJ[j]+i}, v{ACC+4*j+i}, 16, v{WJ[j]+i}")
    e(f"""v_lshl_or_b32 v56, v{ACC+16}, 16, v56
    s_lshl_b32 s7, s{sW}, 1
    v_and_b32 v57, 7, v{vL}
    v_xor_b32 v58, s7, v57
    v_lshlrev_b32 v58, 4, v58
    v_lshl_or_b32 v58, v{vL}, 7, v58
    v_xor_b32 v59, 16, v58""")
    for p_ in range(2):
        for j in range(2): e(f"ds_write_b128 v{58+p_}, {vr(WJ[2*p_+j],4)} offset:{32768+8192*j}")
    e(f"""v_lshrrev_b32 v58, 3, v{vL}
    v_xor_b32 v59, v58, v57
    v_lshlrev_b32 v59, 4, v59
    v_lshl_or_b32 v59, v58, 7, v59
    s_lshl_b32 s7, s{sW}, 12
    v_add_u32 v59, s7, v59
    v_lshlrev_b32 v57, 4, v57
    v_lshl_or_b32 v57, v58, 13, v57
    s_waitcnt lgkmcnt(0)
    s_barrier""")
    for m in range(4): e(f"ds_read_b128 {vr(WJ[m],4)}, v59 offset:{32768+1024*m}")
    D=3;L=2
    def reads(ks):
        for nt in range(2): e(f"ds_read_b128 {vr(32+8*(ks%D)+4*nt,4)}, v{vT0} offset:{ks*2048+nt*1024}")
    for ks in range(L): reads(ks)
    ns=0
    for ks in range(16):
        if ks%4==0:
            e(f"s_waitcnt vmcnt({28-2*ks+ns})"); xpose4(e,ks,(10,14))
            e(f"s_waitcnt vmcnt({24-2*ks+ns})"); xpose4(e,ks+16,(10,14)); e("s_nop 0")
        e(f"s_waitcnt lgkmcnt({2*min(L-1,15-ks)})")
        if 10<=ks<14:
            e(f"buffer_store_dwordx4 {vr(WJ[ks-10],4)}, v57, {sr(SRD_Y,4)}, s52 offen {WT1}\ns_add_u32 s52, s52, {8*8192}"); ns+=1
        if ks==14:
            e(f"v_lshlrev_b32 v57, 2, v{vL}\ns_mov_b64 exec, 0xff\nbuffer_store_dword v56, v57, {sr(SRD_Y,4)}, s51 offen\ns_mov_b64 exec, -1"); ns+=1
        for hf in range(2):
            for nt in range(2):
                a=vr(ACC+16*nt+32*hf,16)
                e(f"{MF32} {a}, {vr(P0+4*(ks+16*hf),4)}, {vr(32+8*(ks%D)+4*nt,4)}, {a if ks else 0}")
        if ks+L<16: reads(ks+L)
    e(f"""v_lshlrev_b32 v{vA}, 4, v{vH}
    v_lshl_or_b32 v{vST}, v{vN}, 12, v{vA}
    s_lshl_b32 s44, s5, 18
    s_lshl_b32 s45, s6, 6
    s_add_u32 s44, s44, s45
    s_add_u32 s45, s44, 0x20000
    s_nop 7""")
    for nt in range(2):
        for i in range(16): e(f"v_fma_f32 v{ACC+16*nt+i}, v{ACC+32+16*nt+i}, v{18+nt}, v{ACC+16*nt+i}")
        store_acc(e,ACC+16*nt,None,SRD_O,vST,f"s{44+nt}",0,32+8*nt)
    wg_end(e,0)
    e("s_endpgm")
    e("K1_tab:")
    srd(e,SRD_O,78,WS_TB,4*26*1024)
    R=14;G=15;A64=16;A32=18;F=20
    e(f"""v_and_b32 v{R}, 15, v{vL}
    v_lshrrev_b32 v{G}, 4, v{vL}
    v_lshlrev_b32 v{vST}, 4, v{vL}
    s_mul_i32 s44, s{sW}, {26*1024}
    s_lshr_b32 s5, s{sW}, 1
    s_and_b32 s4, s{sW}, 1
    s_lshl_b32 s6, s5, 5
    v_and_b32 v{vA}, 12, v{R}
    v_and_b32 v{vB}, 3, v{R}
    v_lshl_add_u32 v{vA}, v{vA}, 1, v{vB}
    v_add_u32 v{vA}, s6, v{vA}
    v_cvt_f32_u32 v{A64}, v{vA}
    v_add_f32 v{A64+1}, 4.0, v{A64}
    v_cvt_f32_u32 v{A32}, v{R}
    v_add_f32 v{A32+1}, {fhex(16.0)}, v{A32}
    v_cvt_f32_u32 v{F}, v{G}""")
    cnt=[0]
    def st(reg):
        e(f"s_add_u32 s45, s44, {1024*cnt[0]}\nbuffer_store_dwordx4 {vr(reg,4)}, v{vST}, {sr(SRD_O,4)}, s45 offen"); cnt[0]+=1
    def sec(j): e(f"s_cmp_lg_u32 s2, {256+j}\ns_cbranch_scc1 K1_t{cnt[0]}"); return f"K1_t{cnt[0]}:"
    rb=[64]
    def nreg(n):
        r=rb[0]; rb[0]+=n; return r
    for t in range(2):
        for ks in range(2):
            lab=sec(2*t+ks)
            e(f"""v_mul_f32 v21, {fhex(1/64)}, v{A64+t}
            v_mul_f32 v22, {fhex(8.0)}, v{F}
            v_add_f32 v22, {fhex(32.0*ks)}, v22
            v_mul_f32 v22, v22, v21
            v_fract_f32 v22, v22""")
            c=nreg(12)
            trig8(e,c,22,21,range(8),"v_cos_f32",32); trig8(e,c+4,22,21,range(8),"v_sin_f32",40,c+8)
            st(c);st(c+4);st(c+8);e(lab)
    for t in range(2):
        lab=sec(t)
        e(f"""v_mul_f32 v21, {fhex(1/32)}, v{A32+t}
        v_mul_f32 v22, 4.0, v{F}
        v_mul_f32 v22, v22, v21
        v_fract_f32 v22, v22""")
        c=nreg(12); o=[0,1,2,3,16,17,18,19]
        trig8(e,c,22,21,o,"v_cos_f32",32); trig8(e,c+4,22,21,o,"v_sin_f32",40,c+8)
        st(c);st(c+4);st(c+8);e(lab)
    for tw in range(2):
        e(f"""s_lshl_b32 s6, s{4 if tw==0 else sW}, 4
        v_lshl_add_u32 v23, v{G}, 2, s6
        v_cvt_f32_u32 v23, v23""")
        for t in range(2):
            lab=sec(2+t)
            e(f"v_mul_f32 v21, {fhex(1/2048)}, v{(A64 if tw==0 else A32)+t}\nv_mul_f32 v22, v21, v23")
            c=nreg(8)
            for i in range(4):
                e(f"v_cos_f32 v{c+i}, v22\nv_sin_f32 v{c+4+i}, v22")
                if i<3: e("v_add_f32 v22, v22, v21")
            if tw==1:
                e("s_nop 0")
                for i in range(8): e(f"v_mul_f32 v{c+i}, {fhex(1/2048)}, v{c+i}")
            e("s_nop 0");st(c);st(c+4);e(lab)
    assert cnt[0]==26
    wg_end(e,0)
    e("K1_exit:\ns_endpgm")
def k3(e):
    header(e,"k3_kernel")
    e(f"""s_cmp_ge_u32 s2, 256
    s_cbranch_scc1 K3_exit
    s_load_dwordx2 s[66:67], s[0:1], 32
    s_load_dwordx2 s[76:77], s[0:1], 64
    s_load_dwordx2 s[78:79], s[0:1], 80""")
    wg_start(e)
    prolog_ids(e)
    e(f"""s_bfe_u32 s6, s2, 0x20001
    s_lshr_b32 s7, s2, 3
    s_waitcnt lgkmcnt(0)""")
    srd(e,SRD_O,76,0,4*MB)
    e(f"""s_bitcmp1_b32 s2, 0
    s_cbranch_scc1 K3_b
    s_and_b32 s4, s7, 3
    s_lshl_b32 s6, s6, 2
    s_add_u32 s4, s4, s6
    s_bfe_u32 s5, s7, 0x30002""")
    srd(e,SRD_P,78,WS_O,2*MB); srd(e,SRD_S,66,0,512*1024)
    proj(e,"K3A",False)
    e(f"""K3_b:
    s_and_b32 s4, s7, 7
    s_lshl_b32 s6, s6, 3
    s_add_u32 s4, s4, s6
    s_bfe_u32 s5, s7, 0x20003
    s_lshl_b32 s5, s5, 2
    s_add_u32 s5, s5, s{sW}""")
    srd(e,SRD_P,78,WS_G,512*1024); srd(e,SRD_S,78,WS_ZT,2*MB)
    s_dma_voff(e,12); tr_addrs(e,False)
    e(f"""v_lshlrev_b32 v{vPO}, 4, v{vL}
    s_lshl_b32 s44, s5, 15
    s_lshl_b32 s45, s4, 7
    s_lshr_b32 s53, s5, 2
    s_add_u32 s53, s53, s4
    s_and_b32 s53, s53, {3 if ROT&8 else 0}""")
    Ld=load_list(e,4096,True,False,45,44); pre_loads(e,Ld)
    main_tr(e,True,Ld,None,False)
    e(f"""v_lshlrev_b32 v{vA}, 4, v{vH}
    v_lshl_or_b32 v{vST}, v{vN}, 16, v{vA}
    s_lshl_b32 s44, s4, 11
    s_lshl_b32 s45, s5, 6
    s_add_u32 s44, s44, s45
    s_add_u32 s44, s44, 1024
    s_add_u32 s45, s44, {2*MB}
    s_nop 7""")
    for nt in range(2): store_acc(e,ACC+16*nt,None,SRD_O,vST,f"s{44+nt}",0,32+8*nt)
    wg_end(e,2)
    e("K3_exit:\ns_endpgm")
```

```python
from gen_common import *
L_V=65536; L_ONE=131072; L_E1=135168; L_E2=145408; L_END=154624
WT=os.environ.get('WT','sc0 sc1')
def attn(e):
    Q=4; VA=8; KA=9; VS=10; S=[16,32]; O=48; P=64; KB=[72,76]; VB=[80,88]
    SQ=8; SK=12; SO=16
    srd(e,SQ,78,WS_Q,2*MB); srd(e,SK,78,WS_KF,131072); srd(e,SO,78,WS_O,2*MB)
    e(f"""v_lshlrev_b32 v11, 4, v2
    v_lshl_or_b32 v11, v3, 5, v11
    s_lshl_b32 s6, s2, 3
    s_add_u32 s6, s6, s3
    s_lshl_b32 s6, s6, 10
    buffer_load_dwordx4 {vr(Q,4)}, v11, {sr(SQ,4)}, s6 offen
    v_lshlrev_b32 v{KA}, 4, v1
    s_lshl_b32 s40, s3, 10""")
    def chunk():
        e(f"""s_mov_b32 m0, s40
        s_add_u32 s41, s40, 0x10000
        buffer_load_dwordx4 v{KA}, {sr(SK,4)}, s40 offen lds
        s_mov_b32 m0, s41
        s_add_u32 s40, s40, 8192
        buffer_load_dwordx4 v{KA}, {sr(SK,4)}, s41 offen lds""")
    for c in range(3): chunk()
    e(f"""v_mov_b32 v12, 0x3f803f80
    v_mov_b32 v13, 0x3f803f80
    s_lshl_b32 s7, s3, 9
    s_add_u32 s7, s7, {L_ONE}
    v_lshl_add_u32 v14, v1, 3, s7
    ds_write_b64 v14, v[12:13]
    v_lshlrev_b32 v14, 4, v3
    v_lshl_or_b32 v14, v2, 8, v14
    v_add_u32 v14, {L_V}, v14
    v_cmp_gt_u32 vcc, 16, v3
    v_mov_b32 v15, {L_ONE}
    v_mov_b32 v12, 0x1000
    v_cndmask_b32 v{VA}, v15, v14, vcc
    v_cndmask_b32 v{VS}, 0, v12, vcc
    s_waitcnt vmcnt(4) lgkmcnt(0)
    s_barrier""")
    def rdK(t): e(f"ds_read_b128 {vr(KB[t&1],4)}, v{KA} offset:{t*1024}")
    def rdV(t):
        if t and t%4==0: e(f"v_add_u32 v{VA}, v{VA}, v{VS}")
        for s in range(2): e(f"ds_read_b128 {vr(VB[t&1]+4*s,4)}, v{VA} offset:{(t&3)*1024+s*512}")
    def qk(t): e(f"{MF32} {vr(S[t&1],16)}, {vr(KB[t&1],4)}, {vr(Q,4)}, 0")
    def pv(t,s): e(f"{MF32} {vr(O,16)}, {vr(VB[t&1]+4*s,4)}, {vr(P+4*s,4)}, {vr(O,16) if (t or s) else 0}")
    stamp(e,8,100,3,0)
    rdK(0); rdK(1); rdV(0)
    e("s_waitcnt lgkmcnt(3)"); qk(0); e("s_nop 7\ns_nop 3")
    for t in range(64):
        s=S[t&1]
        ex=lambda i: e(f"v_exp_f32 v{s+i}, v{s+i}")
        cv=lambda i: e(f"v_cvt_pk_bf16_f32 v{P+i}, v{s+2*i}, v{s+2*i+1}")
        if (t+2)%8==0 and t+2<64:
            c=(t+2)//8
            e(f"s_waitcnt vmcnt({2 if c<7 else 0}) lgkmcnt(0)\ns_barrier")
            if c+2<8: chunk()
        else: e("s_waitcnt lgkmcnt(0)")
        if t%8==7: stamp(e,9+t//8,100,3,0)
        if t+1<64: qk(t+1)
        if t+2<64: rdK(t+2)
        for i in range(4): ex(i)
        if t: pv(t-1,1)
        if t+1<64: rdV(t+1)
        cv(0);ex(4);ex(5);cv(1);ex(6);ex(7);cv(2);ex(8);cv(3);ex(9);ex(10)
        pv(t,0)
        ex(11);cv(4);ex(12);ex(13);cv(5);ex(14);ex(15);cv(6);cv(7)
    e("s_nop 1"); pv(63,1)
    e(f"""s_mov_b32 s42, {fhex(2.0**-40)}
    s_mov_b32 s43, {fhex(2.0**40)}
    s_nop 7
    s_nop 3
    v_cmp_le_f32 vcc, s42, v{O+8}
    v_cmp_ge_f32 s[44:45], s43, v{O+8}
    s_and_b64 vcc, vcc, s[44:45]
    s_cmp_eq_u64 vcc, -1
    s_cbranch_scc0 K2_fb
    K2_fin:
    v_rcp_f32 v12, v{O+8}
    s_nop 0""")
    for i in range(8): e(f"v_mul_f32 v{O+i}, v12, v{O+i}")
    for i in range(4): e(f"v_cvt_pk_bf16_f32 v{P+i}, v{O+2*i}, v{O+2*i+1}")
    e(f"""s_and_b32 s7, s6, 0x7c00
    s_andn2_b32 s6, s6, 0x7fff
    s_lshr_b32 s7, s7, 6
    s_add_u32 s6, s6, s7
    v_lshlrev_b32 v11, 5, v11
    buffer_store_dwordx4 {vr(P,4)}, v11, {sr(SO,4)}, s6 offen""")
    stamp(e,17,100,3,0); stamp(e,18,100,3,0,True); wg_end(e,1); e("s_endpgm")
    e(f"""K2_fb:
    v_mov_b32 v12, 0xff800000
    v_mov_b32 v13, v{KA}
    s_mov_b32 s46, 64
    K2_fb1:
    ds_read_b128 {vr(KB[0],4)}, v13
    v_add_u32 v13, 0x400, v13
    s_waitcnt lgkmcnt(0)
    {MF32} {vr(S[0],16)}, {vr(KB[0],4)}, {vr(Q,4)}, 0
    s_nop 7
    s_nop 7""")
    for i in range(8): e(f"v_max3_f32 v12, v12, v{S[0]+2*i}, v{S[0]+2*i+1}")
    e(f"""s_sub_u32 s46, s46, 1
    s_cmp_lg_u32 s46, 0
    s_cbranch_scc1 K2_fb1
    v_xor_b32 v13, 32, v1
    v_lshlrev_b32 v13, 2, v13
    ds_bpermute_b32 v13, v13, v12
    s_waitcnt lgkmcnt(0)
    v_max_f32 v12, v12, v13""")
    for i in range(16): e(f"v_sub_f32 v{S[1]+i}, 0, v12\nv_mov_b32 v{O+i}, 0")
    e(f"""v_mov_b32 v13, v{KA}
    v_cndmask_b32 v{VA}, v15, v14, s[48:49]
    v_lshrrev_b32 v{VS}, 2, v{VS}
    s_mov_b32 s46, 64
    K2_fb2:
    ds_read_b128 {vr(KB[0],4)}, v13
    ds_read_b128 {vr(VB[0],4)}, v{VA}
    ds_read_b128 {vr(VB[0]+4,4)}, v{VA} offset:512
    v_add_u32 v13, 0x400, v13
    v_add_u32 v{VA}, v{VA}, v{VS}
    s_waitcnt lgkmcnt(0)
    {MF32} {vr(S[0],16)}, {vr(KB[0],4)}, {vr(Q,4)}, {vr(S[1],16)}
    s_nop 7
    s_nop 7""")
    for i in range(16): e(f"v_exp_f32 v{S[0]+i}, v{S[0]+i}")
    e("s_nop 0")
    for i in range(8): e(f"v_cvt_pk_bf16_f32 v{P+i}, v{S[0]+2*i}, v{S[0]+2*i+1}")
    e("s_nop 1")
    for s in range(2): e(f"{MF32} {vr(O,16)}, {vr(VB[0]+4*s,4)}, {vr(P+4*s,4)}, {vr(O,16)}")
    e(f"""s_sub_u32 s46, s46, 1
    s_cmp_lg_u32 s46, 0
    s_cbranch_scc1 K2_fb2
    s_nop 7
    s_nop 7
    s_branch K2_fin""")
def fft(e):
    D64=16; D32=64; TW1=88; TW2=104; X=120; A=136; T=152
    R=4; G=5; vX=6; vE1w=7; vE1r=8; vE2w=9; vE2r=10; vW=11; vZ=12
    SY=8; SYI=12; SZ=16; SZI=20; ST=24; SWR=28; SWI=32; SG=36
    C64=lambda t,ks,k: vr(D64+12*(2*t+ks)+4*k,4)
    C32=lambda t,k: vr(D32+12*t+4*k,4)
    srd(e,SY,78,WS_YT,2*MB); srd(e,SYI,78,WS_YT,2*MB); srd(e,SZ,78,WS_ZT,2*MB); srd(e,SZI,78,WS_ZT,2*MB)
    srd(e,ST,78,WS_TB,4*26*1024); srd(e,SWR,78,WS_WT,257*8192); srd(e,SG,78,WS_G,512*1024)
    e(f"""s_sub_u32 s3, s3, 8
    s_and_b32 s4, s3, 1
    s_lshr_b32 s5, s3, 1
    s_and_b32 s6, s2, 7
    s_lshl_b32 s6, s6, 5
    s_lshr_b32 s7, s2, 3
    s_add_u32 s6, s6, s7
    s_lshl_b32 s40, s6, 13
    s_add_u32 s41, s40, 4096
    s_lshl_b32 s42, s6, 13
    s_lshl_b32 s7, s3, 11
    s_add_u32 s42, s42, s7
    s_cmp_eq_u32 s6, 0
    s_cselect_b32 s{SYI+2}, 0, s{SYI+2}
    s_cselect_b32 s{SZI+2}, 0, s{SZI+2}
    s_cselect_b32 s47, 1, 0
    v_and_b32 v{R}, 15, v1
    v_lshrrev_b32 v{G}, 4, v1
    s_lshl_b32 s7, s4, 11
    v_lshlrev_b32 v13, 4, v{G}
    v_lshl_add_u32 v{vX}, v{R}, 7, v13
    v_add_u32 v{vX}, s7, v{vX}""")
    def ldx():
        for p in range(2):
            for ks in range(2): e(f"buffer_load_dwordx4 {vr(X+8*p+4*ks,4)}, v{vX}, {sr(SYI if p else SY,4)}, s{40+p} offen offset:{64*ks}")
    WB=X+8
    def ldw():
        for t in range(2): e(f"buffer_load_dwordx4 {vr(WB+4*t,4)}, v14, {sr(SWR,4)}, s42 offen offset:{1024*t}")
    e(f"s_mul_i32 s43, s3, {26*1024}\nv_lshlrev_b32 v14, 4, v1")
    e(f"""s_lshl_b32 s7, s5, 6
    v_add_u32 v{vZ}, s7, v{vX}
    v_and_b32 v15, 12, v{R}
    v_and_b32 v{vW}, 3, v{R}
    v_lshl_add_u32 v15, v15, 1, v{vW}
    s_lshl_b32 s7, s5, 5
    v_add_u32 v15, s7, v15
    v_mul_u32_u24 v15, 80, v15
    s_lshl_b32 s7, s4, 3
    s_add_u32 s7, s7, {L_E1}
    v_add3_u32 v{vE1w}, v15, v13, s7
    s_lshl_b32 s7, s3, 4
    v_add_u32 v15, s7, v{R}
    v_mul_u32_u24 v{vE1r}, 80, v15
    v_add_u32 v{vE1r}, {L_E1}, v{vE1r}
    v_add_u32 v{vE1r}, v{vE1r}, v13
    v_mul_u32_u24 v15, 144, v{R}
    s_lshl_b32 s7, s3, 5
    s_add_u32 s7, s7, {L_E2}
    v_lshl_add_u32 v{vE2w}, v{G}, 3, s7
    v_add_u32 v{vE2w}, v{vE2w}, v15
    s_mul_i32 s7, s4, {16*144}
    s_add_u32 s7, s7, {L_E2}
    v_add3_u32 v{vE2r}, v15, v13, s7""")
    e(f"""s_cmp_ge_u32 s3, 2
    s_cbranch_scc1 K2_nog
    s_lshl_b32 s7, s2, 1
    s_add_u32 s7, s7, s3
    s_lshl_b32 s44, s7, 10
    s_and_b32 s45, s7, 31
    s_lshr_b32 s7, s7, 5
    s_lshl_b32 s7, s7, 5
    s_lshl_b32 s45, s45, 3""")
    swap23(e,A,3,A+1)
    e(f"""v_add_u32 v{A}, s7, v{A}
    v_cvt_f32_u32 v{A}, v{A}
    v_lshl_add_u32 v{A+1}, v2, 2, s45
    v_cmp_eq_u32 vcc, 0, v{A+1}
    v_cvt_f32_u32 v{A+1}, v{A+1}
    v_mul_f32 v{A+2}, {fhex(1/512)}, v{A}
    v_mul_f32 v{A+3}, v{A+2}, v{A+1}
    v_fract_f32 v{A+3}, v{A+3}
    v_mul_f32 v{A+4}, 0.5, v{A}
    v_mov_b32 v{A+5}, {fhex(1/256)}
    v_mov_b32 v{A+6}, {fhex(1/512)}
    v_cndmask_b32 v{A+6}, v{A+5}, v{A+6}, vcc""")
    for q in range(4):
        e(f"v_add_f32 v{T+2*q+1}, 0x3e800000, v{A+3}")
        if q==0: e(f"v_fract_f32 v{A+4}, v{A+4}\nv_cndmask_b32 v{T+1}, v{T+1}, v{A+4}, vcc")
        e(f"v_cos_f32 v{T+2*q}, v{A+3}\nv_cos_f32 v{T+2*q+1}, v{T+2*q+1}")
        if q<3: e(f"v_add_f32 v{A+3}, v{A+3}, v{A+2}")
    e("s_nop 0")
    for j in range(8): e(f"v_mul_f32 v{T+j}, v{A+6 if j<2 else A+5}, v{T+j}")
    for q in range(4): e(f"v_cvt_pk_bf16_f32 v{T+8+q}, v{T+2*q}, v{T+2*q+1}")
    e(f"""buffer_store_dwordx4 {vr(T+8,4)}, v14, {sr(SG,4)}, s44 offen {WT}
    K2_nog:
    s_barrier""")
    ldx()
    order=list(range(12))+list(range(18,22))+list(range(12,18))+list(range(22,26))
    for f in order:
        e(f"s_add_u32 s44, s43, {f*1024}\nbuffer_load_dwordx4 {vr(D64+4*f,4)}, v14, {sr(ST,4)}, s44 offen")
    e("s_barrier\ns_waitcnt vmcnt(10)\nK2_col:")
    def cmul(t,c,s,sign):
        for i in range(4):
            ar=A+4*t+i; ai=A+8+4*t+i
            e(f"v_mul_f32 v{T+4*t+i}, v{ar}, v{c+i}\nv_mul_f32 v{T+8+4*t+i}, v{ai}, v{c+i}")
            e(f"v_fma_f32 v{T+4*t+i}, {'-' if sign>0 else ''}v{ai}, v{s+i}, v{T+4*t+i}")
            e(f"v_fma_f32 v{T+8+4*t+i}, {'' if sign>0 else '-'}v{ar}, v{s+i}, v{T+8+4*t+i}")
    def pack(src):
        for i in range(8): e(f"v_cvt_pk_bf16_f32 v{X+i}, v{src+2*i}, v{src+2*i+1}")
    xr=lambda ks: vr(X+4*ks,4); xi=lambda ks: vr(X+8+4*ks,4)
    ar=lambda t: vr(A+4*t,4); ai=lambda t: vr(A+8+4*t,4)
    for ks in range(2):
        for t in range(2):
            e(f"{MF16} {ar(t)}, {xr(ks)}, {C64(t,ks,0)}, {ar(t) if ks else 0}\n{MF16} {ai(t)}, {xi(ks)}, {C64(t,ks,0)}, {ai(t) if ks else 0}")
        for t in range(2):
            e(f"{MF16} {ar(t)}, {xi(ks)}, {C64(t,ks,1)}, {ar(t)}\n{MF16} {ai(t)}, {xr(ks)}, {C64(t,ks,2)}, {ai(t)}")
    e("s_nop 7")
    ldw()
    for t in range(2): cmul(t,TW1+8*t,TW1+8*t+4,-1)
    pack(T)
    for p in range(2):
        for t in range(2): e(f"ds_write_b64 v{vE1w}, {vr(X+4*p+2*t,2)} offset:{p*5120+t*320}")
    e(f"""s_waitcnt lgkmcnt(0)
    s_barrier
    ds_read_b128 {vr(X,4)}, v{vE1r}
    ds_read_b128 {vr(X+4,4)}, v{vE1r} offset:5120
    s_waitcnt vmcnt(0) lgkmcnt(0)""")
    ur=vr(X,4); ui=vr(X+4,4)
    for t in range(2): e(f"{MF16} {ar(t)}, {C32(t,0)}, {ur}, 0\n{MF16} {ai(t)}, {C32(t,0)}, {ui}, 0")
    for t in range(2): e(f"{MF16} {ar(t)}, {C32(t,1)}, {ui}, {ar(t)}\n{MF16} {ai(t)}, {C32(t,2)}, {ur}, {ai(t)}")
    for i in range(8): e(f"v_lshlrev_b32 v{T+i}, 16, v{WB+i}\nv_and_b32 v{WB+i}, 0xffff0000, v{WB+i}")
    e("s_nop 1")
    for t in range(2):
        for i in range(4):
            a=A+4*t+i; b=A+8+4*t+i; wr=T+4*t+i; wi=WB+4*t+i
            e(f"""v_mul_f32 v13, v{b}, v{wi}
            v_mul_f32 v{wi}, v{a}, v{wi}
            v_fma_f32 v{a}, v{a}, v{wr}, -v13
            v_fma_f32 v{b}, v{b}, v{wr}, v{wi}""")
    pack(A)
    e("s_nop 1")
    for t in range(2): e(f"{MF16} {ar(t)}, {ur}, {C32(t,0)}, 0\n{MF16} {ai(t)}, {ui}, {C32(t,0)}, 0")
    for t in range(2): e(f"{MF16} {ar(t)}, {ui}, {C32(t,2)}, {ar(t)}\n{MF16} {ai(t)}, {ur}, {C32(t,1)}, {ai(t)}")
    e("s_nop 7")
    for t in range(2): cmul(t,TW2+8*t,TW2+8*t+4,1)
    pack(T)
    for p in range(2):
        for t in range(2): e(f"ds_write_b64 v{vE2w}, {vr(X+4*p+2*t,2)} offset:{p*4608+t*16*144}")
    e("s_waitcnt lgkmcnt(0)\ns_barrier")
    for p in range(2):
        for ks in range(2): e(f"ds_read_b128 {vr(X+8*p+4*ks,4)}, v{vE2r} offset:{p*4608+ks*64}")
    e("s_waitcnt lgkmcnt(0)")
    for ks in range(2):
        for t in range(2):
            e(f"{MF16} {ar(t)}, {C64(t,ks,0)}, {xr(ks)}, {ar(t) if ks else 0}\n{MF16} {ai(t)}, {C64(t,ks,0)}, {xi(ks)}, {ai(t) if ks else 0}")
        for t in range(2):
            e(f"{MF16} {ar(t)}, {C64(t,ks,2)}, {xi(ks)}, {ar(t)}\n{MF16} {ai(t)}, {C64(t,ks,1)}, {xr(ks)}, {ai(t)}")
    e("s_nop 7")
    for i in range(8): e(f"v_cvt_pk_bf16_f32 v{T+i}, v{A+2*i}, v{A+2*i+1}")
    e(f"""buffer_store_dwordx4 {vr(T,4)}, v{vZ}, {sr(SZ,4)}, s40 offen {WT}
    buffer_store_dwordx4 {vr(T+4,4)}, v{vZ}, {sr(SZI,4)}, s41 offen {WT}
    s_cmp_eq_u32 s47, 0
    s_cbranch_scc1 K2_exit
    s_mov_b32 s47, 0
    s_mov_b32 s40, 4096
    s_add_u32 s42, s42, {256*8192}""")
    ldx()
    e("s_waitcnt vmcnt(0)\ns_branch K2_col")
def k2(e):
    header(e,"k2_kernel")
    wg_start(e)
    e(f"""s_cmp_ge_u32 s2, 256
    s_cbranch_scc1 K2_exit
    s_load_dwordx2 s[78:79], s[0:1], 80
    v_lshrrev_b32 v4, 6, v0
    v_and_b32 v1, 63, v0
    v_readfirstlane_b32 s3, v4
    v_lshrrev_b32 v2, 5, v1
    v_and_b32 v3, 31, v1
    v_cmp_gt_u32 s[48:49], 16, v3
    s_waitcnt lgkmcnt(0)
    s_cmp_ge_u32 s3, 8
    s_cbranch_scc1 K2_fft""")
    stamp_init(e)
    attn(e)
    e("K2_fft:")
    fft(e)
    e("K2_exit:\ns_endpgm")
```

```python
import sys
from gen_common import *
import gen_k13, gen_k2
ref=open('concat_heads__grouped_kv_mqa__spectral_gfnet__prompt.s.ref').read().split('\n')
top='\n'.join(l for l in ref[:12])+'\n'
top+=f"""; three launches: k1 = QKV projection + row DFT + FFT tables ; k2 = attention + column FFT/filter/IFFT ; k3 = out projection + inverse row DFT
; @launch kernel=k1_kernel grid=(260,1,1) block=(256,1,1) lds=81920
; @launch kernel=k2_kernel grid=(256,1,1) block=(768,1,1) lds={gen_k2.L_END}
; @launch kernel=k3_kernel grid=(256,1,1) block=(256,1,1) lds=65536
.amdgcn_target "amdgcn-amd-amdhsa--gfx950"
.text
"""
e=E(); gen_k13.k1(e); gen_k2.k2(e); gen_k13.k3(e)
s=top+e.text()+'.section .rodata,"a"\n'+''.join('.p2align 6\n'+desc(n,v) for n,v in (("k1_kernel",256),("k2_kernel",168),("k3_kernel",256)))
import os,re
STM=os.environ.get('STM','')
if STM: s=re.sub(r'(buffer_store_\S+ .*)',lambda m:m.group(1)+' '+STM,s)
out=sys.argv[1] if len(sys.argv)>1 else 'concat_heads__grouped_kv_mqa__spectral_gfnet__prompt.s'
open(out,'w').write(s); print(len(s),'bytes')
```

```python
from gen_common import *
P0=128; ACC=64; SF=32
vL=1; vH=2; vN=3; vPO=4; vSO=5; vT0=6; vT1=7; vKV=8; vST=9; vA=10; vB=11; vC=12; vD=13
sW=3
SRD_P=8; SRD_S=12; SRD_O=16; SRD_X=20; SRD_Y=24
def prolog_ids(e):
    e(f"""v_lshrrev_b32 v{vA}, 6, v0
    v_and_b32 v{vL}, 63, v0
    v_readfirstlane_b32 s{sW}, v{vA}
    v_lshrrev_b32 v{vH}, 5, v{vL}
    v_and_b32 v{vN}, 31, v{vL}""")
def s_dma_voff(e,rowstride_log2):
    e(f"""v_lshrrev_b32 v{vA}, 2, v{vL}
    v_and_b32 v{vA}, 4, v{vA}
    v_xor_b32 v{vA}, v{vA}, v{vL}
    v_and_b32 v{vA}, 7, v{vA}
    v_lshlrev_b32 v{vA}, 4, v{vA}
    v_lshrrev_b32 v{vB}, 3, v{vL}
    v_lshl_or_b32 v{vSO}, v{vB}, {rowstride_log2}, v{vA}""")
def tr_addrs(e,swap):
    e(f"""v_and_b32 v{vA}, 3, v{vL}""")
    if swap: e(f"""v_lshrrev_b32 v{vB}, 1, v{vA}
    v_and_b32 v{vA}, 1, v{vA}
    v_lshl_or_b32 v{vA}, v{vA}, 1, v{vB}""")
    e(f"""v_lshlrev_b32 v{vA}, 3, v{vA}
    v_bfe_u32 v{vB}, v{vL}, 2, 2
    v_lshl_or_b32 v{vKV}, v{vB}, 5, v{vA}
    v_lshl_or_b32 v{vKV}, v{vH}, 8, v{vKV}
    v_add_u32 v{vKV}, 0x10000, v{vKV}
    v_lshl_or_b32 v{vA}, v{vB}, 7, v{vA}
    v_lshl_or_b32 v{vA}, v{vH}, 10, v{vA}
    v_bfe_u32 v{vB}, v{vL}, 4, 1
    v_lshl_or_b32 v{vA}, v{vB}, 5, v{vA}
    v_bfe_u32 v{vB}, v{vL}, 3, 1
    v_lshl_or_b32 v{vT0}, v{vB}, 6, v{vA}
    v_xor_b32 v{vT1}, 64, v{vT0}""")
def seg128_addr(e,d,rowlog,swap=False):
    e(f"v_and_b32 v{vB}, 7, v{vL}")
    if swap: e(f"v_and_b32 v{vC}, 4, v{vL}\nv_add_u32 v{vB}, v{vB}, v{vC}")
    e(f"""v_bfe_u32 v{vA}, v{vL}, 3, 2
    v_lshlrev_b32 v{vA}, 5, v{vA}
    v_lshl_or_b32 v{vA}, v{vH}, 4, v{vA}
    v_lshl_or_b32 v{d}, v{vB}, {rowlog}, v{vA}""")
def xpose4(e,ks,T,base=P0):
    R=[base+4*(ks+q) for q in range(4)]
    for a in range(2):
        for i in range(4): e(f"v_mov_b32_dpp v{T[a]+i}, v{R[2*a]+i} row_ror:8 row_mask:0xf bank_mask:0xf")
    for a in range(2):
        for i in range(4): e(f"v_mov_b32_dpp v{R[2*a]+i}, v{R[2*a+1]+i} row_ror:8 row_mask:0xf bank_mask:0xc")
    for a in range(2):
        for i in range(4): e(f"v_mov_b32_dpp v{R[2*a+1]+i}, v{T[a]+i} quad_perm:[0,1,2,3] row_mask:0xf bank_mask:0x3")
    for a in range(2):
        for i in range(4): e(f"v_permlane16_swap_b32 v{R[a]+i}, v{R[a+2]+i}")
def load_list(e,rowstride,pfrag,kv,sS,sP):
    e(f"s_lshl_b32 s40, s{sW}, 12\ns_mul_i32 s54, s{sW}, {32*rowstride}\ns_add_u32 s54, s54, s{sS}")
    if kv: e(f"s_lshl_b32 s56, s{sW}, 10\ns_add_u32 s43, s56, 0x10000\nv_lshlrev_b32 v{vD}, 4, v{vL}")
    Ld=[]
    for c in range(4):
        hd=(f"s_add_u32 s55, s53, {c}\ns_and_b32 s55, s55, 3\ns_mul_i32 s41, s55, {128*rowstride}\ns_add_u32 s41, s41, s54\n"
            f"s_lshl_b32 s57, s55, {13 if pfrag else 8}\ns_add_u32 s57, s57, s{sP}\n")
        if kv: hd+="s_lshl_b32 s42, s55, 12\ns_add_u32 s42, s42, s56\n"
        for i in range(4):
            Ld.append((hd if i==0 else "")+f"s_mov_b32 m0, s40\ns_add_u32 s40, s40, {1024 if i<3 else 16384-3072}\n"
              f"buffer_load_dwordx4 v{vSO}, {sr(SRD_S,4)}, s41 offen lds"+(f"\ns_add_u32 s41, s41, {8*rowstride}" if i<3 else ""))
        if kv:
            Ld.append(f"s_mov_b32 m0, s43\ns_add_u32 s43, s43, 4096\n"
              f"buffer_load_dwordx4 v{vD}, {sr(SRD_X,4)}, s42 offen lds")
        for k in range(8):
            ks=8*c+k
            if pfrag:
                Ld.append(f"buffer_load_dwordx4 {vr(P0+4*ks,4)}, v{vPO}, {sr(SRD_P,4)}, s57 offen offset:{(ks&3)*1024}"+(f"\ns_add_u32 s57, s57, 4096" if k==3 else ""))
            else:
                Ld.append(f"s_add_u32 s58, s57, {(k&3)*8192}\nbuffer_load_dwordx4 {vr(P0+4*ks,4)}, v{vPO}, {sr(SRD_P,4)}, s58 offen offset:{(k>>2)*128}")
    return Ld
ROT=int(os.environ.get('ROT','7'))
PRE=int(os.environ.get('PRE','2'))
def pre_loads(e,Ld):
    for x in Ld[:PRE*len(Ld)//4]: e(x)
def main_tr(e,p_is_a,Ld,kv,seg,sti=None):
    per=len(Ld)//4; pre=per-8
    D=3 if kv else 4; L=D-1; nr=6 if kv else 4; st=12 if kv else 8
    base=28 if kv else 32
    done=[-1]; iss=[PRE*per]
    def issue(n):
        while iss[0]<min(n,len(Ld)): e(Ld[iss[0]]); iss[0]+=1
    def vwait(pos):
        issue(pos+1)
        if pos>done[0]:
            e(f"s_waitcnt vmcnt({iss[0]-pos-1})"); done[0]=pos
    def reads(ks):
        if ks%8==0:
            vwait(per*(ks//8)+pre-1); e("s_barrier")
            if sti is not None: stamp(e,sti+ks//8,40,3,1,vt=(14,15))
        b=base+st*(ks%D)
        for mt in range(2):
            for u in range(2):
                e(f"ds_read_b64_tr_b16 {vr(b+4*mt+2*u,2)}, v{vT0+mt} offset:{ks*2048+u*512}")
        if kv:
            for u in range(2): e(f"ds_read_b64_tr_b16 {vr(b+8+2*u,2)}, v{vKV} offset:{ks*512+u*128}")
    for ks in range(L): reads(ks)
    for ks in range(32):
        ahead=min(L-1,31-ks)
        if seg:
            if ks%4==0: vwait(per*(ks//8)+pre+ks%8+3); xpose4(e,ks,(16,20))
        else: vwait(per*(ks//8)+pre+ks%8)
        e(f"s_waitcnt lgkmcnt({ahead*nr})")
        b=base+st*(ks%D); p=vr(P0+4*ks,4)
        for mt in range(2):
            a=vr(ACC+16*mt,16); c=a if ks else '0'; s=vr(b+4*mt,4)
            e(f"{MF32} {a}, {p if p_is_a else s}, {s if p_is_a else p}, {c}")
        if kv:
            a=vr(ACC+32,16); c=a if ks else '0'; s=vr(b+8,4)
            e(f"{MF32} {a}, {s if kv=='K' else p}, {p if kv=='K' else s}, {c}")
        if ks+L<32: reads(ks+L)
        issue(PRE*per+((ks+1)*per+7)//8)
def store_acc(e,acc,scale,srd_,voff,soff,off,tmp):
    if scale is not None:
        for i in range(16): e(f"v_mul_f32 v{acc+i}, {scale}, v{acc+i}")
    for i in range(8): e(f"v_cvt_pk_bf16_f32 v{tmp+i}, v{acc+2*i}, v{acc+2*i+1}")
    for j in range(2): e(f"buffer_store_dwordx4 {vr(tmp+4*j,4)}, v{voff}, {sr(srd_,4)}, {soff} offen offset:{off+32*j}")
WQ=os.environ.get('WQ','sc0 sc1'); WY=os.environ.get('WY','sc0 sc1'); WO=os.environ.get('WO','sc0 sc1')
def store128(e,scale,srd_,soff,rowlog,wt):
    for i in range(32):
        if scale is not None: e(f"v_mul_f32 v{ACC+i}, {scale}, v{ACC+i}")
    for i in range(16): e(f"v_cvt_pk_bf16_f32 v{32+i}, v{ACC+2*i}, v{ACC+2*i+1}")
    xpose4(e,0,(48,52),32)
    for q in range(4):
        e(f"buffer_store_dwordx4 {vr(32+4*q,4)}, v{vST}, {sr(srd_,4)}, s{soff} offen {wt}")
        if q<3: e(f"s_add_u32 s{soff}, s{soff}, {8<<rowlog}")
def seg64_st(e,rowlog):
    e(f"""v_and_b32 v{vB}, 15, v{vL}
    v_bfe_u32 v{vA}, v{vL}, 4, 1
    v_lshlrev_b32 v{vA}, 5, v{vA}
    v_lshl_or_b32 v{vA}, v{vH}, 4, v{vA}
    v_lshl_or_b32 v{vST}, v{vB}, {rowlog}, v{vA}""")
def store64(e,acc,srd_,soff,rowlog,tmp,wt):
    for i in range(8): e(f"v_cvt_pk_bf16_f32 v{tmp+i}, v{acc+2*i}, v{acc+2*i+1}")
    e("s_nop 1")
    for i in range(4): e(f"v_permlane16_swap_b32 v{tmp+i}, v{tmp+4+i}")
    e(f"""buffer_store_dwordx4 {vr(tmp,4)}, v{vST}, {sr(srd_,4)}, s{soff} offen {wt}
    s_add_u32 s{soff}, s{soff}, {16<<rowlog}
    buffer_store_dwordx4 {vr(tmp+4,4)}, v{vST}, {sr(srd_,4)}, s{soff} offen {wt}""")
def proj(e,pre,is_q):
    s_dma_voff(e,10); tr_addrs(e,True)
    if is_q: seg128_addr(e,vPO,10)
    else: e(f"v_lshlrev_b32 v{vPO}, 4, v{vL}")
    e(f"""s_lshl_b32 s6, s4, 2
    s_add_u32 s6, s6, s{sW}
    s_lshl_b32 s44, s6, 15
    s_lshl_b32 s45, s5, 7
    s_add_u32 s53, s4, s5
    s_and_b32 s53, s53, {3 if (ROT&(1 if is_q else 4)) else 0}""")
    stamp_init(e)
    Ld=load_list(e,1024,not is_q,is_q,45,44); pre_loads(e,Ld)
    stamp(e,0 if is_q else 20,40,3,1,vt=(14,15))
    if is_q:
        e(f"""s_and_b32 s7, s5, 3
        s_cmp_eq_u32 s7, s{sW}
        s_cbranch_scc0 {pre}_plain
        s_cmp_lt_u32 s5, 4
        s_cbranch_scc0 {pre}_v""")
        main_tr(e,False,Ld,'K',True)
        e("s_nop 7\ns_nop 7")
        for i in range(4): e(f"v_cvt_pk_bf16_f32 v{16+i}, v{ACC+32+2*i}, v{ACC+33+2*i}")
        e(f"""v_lshlrev_b32 v{vA}, 4, v{vL}
        s_lshl_b32 s46, s6, 10
        buffer_store_dwordx4 v[16:19], v{vA}, {sr(SRD_Y,4)}, s46 offen
        s_branch {pre}_epi
        {pre}_v:""")
        main_tr(e,False,Ld,'V',True)
        e("s_nop 7\ns_nop 7")
        for i in range(8): e(f"v_cvt_pk_bf16_f32 v{16+i}, v{ACC+32+2*i}, v{ACC+33+2*i}")
        e(f"""v_lshlrev_b32 v{vA}, 4, v{vN}
        v_lshl_or_b32 v{vA}, v{vH}, 8, v{vA}
        v_cmp_gt_u32 vcc, 16, v{vN}
        s_lshl_b32 s46, s6, 10
        s_add_u32 s46, s46, 0x10000
        s_and_saveexec_b64 s[48:49], vcc
        buffer_store_dwordx4 v[16:19], v{vA}, {sr(SRD_Y,4)}, s46 offen
        buffer_store_dwordx4 v[20:23], v{vA}, {sr(SRD_Y,4)}, s46 offen offset:512
        s_mov_b64 exec, s[48:49]
        s_branch {pre}_epi
        {pre}_plain:""")
    main_tr(e,False,Ld,None,is_q,1 if is_q else 21)
    e(f"{pre}_epi:")
    if is_q: e(f"s_add_u32 s44, s44, s45\ns_mov_b32 s47, {fhex(0.25*1.4426950408889634)}")
    else: e("s_lshl_b32 s44, s44, 1\ns_add_u32 s44, s44, s45")
    seg128_addr(e,vST,10 if is_q else 11)
    e("s_nop 7")
    stamp(e,5 if is_q else 25,40,3,1,vt=(14,15))
    store128(e,'s47' if is_q else None,SRD_O,44,10 if is_q else 11,WQ if is_q else WO)
    if STAMP: e("s_waitcnt vmcnt(0)")
    stamp(e,6 if is_q else 26,40,3,1,vt=(14,15)); stamp(e,7 if is_q else 27,40,3,1,True,vt=(14,15))
    wg_end(e,0 if is_q else 2)
    e("s_endpgm")
```

```python
from gen_common import *
from gen_gemm import *
def trig8(e,dst,vA0,vS,offs,fn,tmp,neg=None):
    cst={1:'1.0',2:'2.0',4:'4.0'}
    for j,o in enumerate(offs):
        if o==0: e(f"{fn} v{tmp+j}, v{vA0}")
        else:
            if o not in cst: e(f"s_mov_b32 s60, {fhex(float(o))}")
            e(f"v_fma_f32 v{tmp+j}, v{vS}, {cst.get(o,'s60')}, v{vA0}\n{fn} v{tmp+j}, v{tmp+j}")
    e("s_nop 0")
    for i in range(4): e(f"v_cvt_pk_bf16_f32 v{dst+i}, v{tmp+2*i}, v{tmp+2*i+1}")
    if neg is not None:
        for i in range(4): e(f"v_xor_b32 v{neg+i}, 0x80008000, v{dst+i}")
def k1(e):
    header(e,"k1_kernel")
    e(f"""s_cmp_gt_u32 s2, 259
    s_cbranch_scc1 K1_exit
    s_load_dwordx8 s[64:71], s[0:1], 0
    s_load_dwordx2 s[72:73], s[0:1], 40
    s_load_dwordx4 s[80:83], s[0:1], 48
    s_load_dwordx2 s[78:79], s[0:1], 80""")
    wg_start(e)
    prolog_ids(e)
    e(f"""s_bfe_u32 s6, s2, 0x20001
    s_lshr_b32 s7, s2, 3
    s_and_b32 s4, s7, 3
    s_lshl_b32 s6, s6, 2
    s_add_u32 s4, s4, s6
    s_bfe_u32 s5, s7, 0x30002
    s_waitcnt lgkmcnt(0)
    s_cmp_ge_u32 s2, 256
    s_cbranch_scc1 K1_tab
    s_bitcmp1_b32 s2, 0
    s_cbranch_scc1 K1_b""")
    srd(e,SRD_P,64,0,2*MB); srd(e,SRD_S,66,0,512*1024); srd(e,SRD_O,78,WS_Q,2*MB); srd(e,SRD_Y,78,WS_KF,131072)
    srd(e,SRD_X,68,0,16384)
    e(f"s_cmp_lt_u32 s5, 4\ns_cbranch_scc1 K1_k\ns_mov_b32 s{SRD_X}, s70\ns_mov_b32 s{SRD_X+1}, s71\nK1_k:")
    proj(e,"K1A",True)
    e("K1_b:")
    srd(e,SRD_P,72,0,2*MB); srd(e,SRD_O,78,WS_YT,2*MB)
    srd(e,SRD_S,80,0,2048*514); srd(e,SRD_X,82,0,2048*514); srd(e,SRD_Y,78,WS_WT,257*8192)
    WJ=[20,24,28,60]
    WT1=os.environ.get('WT1','sc0 sc1')
    e(f"""s_lshl_b32 s7, s4, 3
    s_add_u32 s7, s7, s5
    s_and_b32 s59, s7, 1
    s_bfe_u32 s50, s7, 0x30001
    s_lshr_b32 s51, s7, 4
    s_lshl_b32 s52, s51, 7
    s_lshl_b32 s7, s50, 2
    s_add_u32 s52, s52, s7
    s_add_u32 s52, s52, s{sW}
    s_mul_i32 s52, s52, 1028
    s_lshl_b32 s7, s59, 8
    v_lshl_add_u32 v58, v{vL}, 1, s7
    v_and_b32 v59, 3, v{vL}
    v_lshrrev_b32 v57, 2, v{vL}
    v_lshl_or_b32 v59, v59, 6, v57
    v_mul_u32_u24 v59, 514, v59""")
    for p_ in range(2):
        for i in range(4):
            e(f"s_add_u32 s7, s52, {(64*i+p_)*514}")
            for j in range(2):
                e(f"buffer_load_ushort v{WJ[2*p_+j]+i}, v58, {sr(SRD_S,4)}, s7 offen offset:{128*j}")
                e(f"buffer_load_ushort v{ACC+4*(2*p_+j)+i}, v58, {sr(SRD_X,4)}, s7 offen offset:{128*j}")
    e(f"""s_mov_b64 exec, 0xff
    buffer_load_ushort v56, v59, {sr(SRD_S,4)}, s52 offen offset:512
    buffer_load_ushort v{ACC+16}, v59, {sr(SRD_X,4)}, s52 offen offset:512
    s_mov_b64 exec, -1
    s_lshr_b32 s52, s50, 1
    s_lshl_b32 s52, s52, 11
    s_and_b32 s50, s50, 1
    s_lshl_b32 s50, s50, 7
    s_add_u32 s52, s52, s50
    s_lshl_b32 s51, s51, 8
    s_add_u32 s52, s52, s51
    s_lshl_b32 s51, s{sW}, 5
    s_add_u32 s51, s51, s52
    s_add_u32 s51, s51, {256*8192}
    s_lshl_b32 s59, s59, 20
    s_add_u32 s52, s52, s59
    s_lshl_b32 s59, s{sW}, 18
    s_add_u32 s52, s52, s59""")
    seg128_addr(e,vPO,15,True)
    e(f"""s_lshl_b32 s6, s4, 2
    s_add_u32 s6, s6, s{sW}
    s_and_b32 s44, s6, 1
    s_lshl_b32 s44, s44, 20
    s_lshr_b32 s45, s6, 1
    s_lshl_b32 s45, s45, 10
    s_add_u32 s44, s44, s45""")
    XL=[]
    e(f"s_lshl_b32 s53, s5, 1\ns_and_b32 s53, s53, {6 if ROT&2 else 0}")
    for j in range(4):
        for hf in range(2):
            for u in range(4):
                k=4*j+u+16*hf
                hd=f"s_add_u32 s57, s53, {2*j}\ns_and_b32 s57, s57, 7\ns_lshl_b32 s57, s57, 6\ns_add_u32 s57, s57, s44\n" if hf+u==0 else ""
                XL.append(hd+f"s_add_u32 s55, s57, {((u>>1)*16+(u&1)*4)<<15}\nbuffer_load_dwordx4 {vr(P0+4*k,4)}, v{vPO}, {sr(SRD_P,4)}, s55 offen offset:{hf*512}")
    NX=8
    for x in XL[:NX]: e(x)
    for nt in range(2):
        e(f"""s_lshl_b32 s7, s5, 6
        s_add_u32 s7, s7, {32*nt}
        v_add_u32 v{vA}, s7, v{vN}
        v_lshrrev_b32 v{vB}, 1, v{vA}
        v_and_b32 v{vC}, 1, v{vA}
        v_cmp_eq_u32 vcc, 1, v{vA}
        v_mov_b32 v{vD}, 0x100
        v_cvt_f32_u32 v{vC}, v{vC}
        v_cndmask_b32 v{vB}, v{vB}, v{vD}, vcc
        v_mul_f32 v{vC}, 0x3e800000, v{vC}
        v_cndmask_b32 v{16+nt}, v{vC}, 0, vcc
        v_cvt_f32_u32 v{14+nt}, v{vB}
        v_mul_f32 v{14+nt}, {fhex(1/512)}, v{14+nt}
        v_lshlrev_b32 v{vB}, 31, v{vB}
        v_or_b32 v{18+nt}, 1.0, v{vB}""")
    e(f"""s_lshl_b32 s56, s53, 1
    s_add_u32 s56, s56, s{sW}
    s_lshl_b32 s7, s{sW}, 11
    v_lshl_add_u32 v{vT1}, v{vL}, 4, s7
    v_lshlrev_b32 v{vT0}, 4, v{vL}""")
    for c in range(4):
        e(f"s_add_u32 s7, s56, {4*c}\ns_and_b32 s7, s7, 15\ns_lshl_b32 s7, s7, 4\nv_lshl_add_u32 v0, v{vH}, 3, s7\nv_cvt_f32_u32 v0, v0")
        for nt in range(2):
            e(f"v_fma_f32 v8, v{14+nt}, v0, v{16+nt}\nv_fract_f32 v8, v8")
            tb=32+12*nt
            trig8(e,tb+8,8,14+nt,range(8),"v_cos_f32",tb)
            e(f"ds_write_b128 v{vT1}, {vr(tb+8,4)} offset:{c*8192+nt*1024}")
            q=2*c+nt
            for x in XL[NX+3*q:NX+3*q+3]: e(x)
    e("s_waitcnt vmcnt(32)")
    for j in range(4):
        for i in range(4): e(f"v_lshl_or_b32 v{WJ[j]+i}, v{ACC+4*j+i}, 16, v{WJ[j]+i}")
    e(f"""v_lshl_or_b32 v56, v{ACC+16}, 16, v56
    s_lshl_b32 s7, s{sW}, 1
    v_and_b32 v57, 7, v{vL}
    v_xor_b32 v58, s7, v57
    v_lshlrev_b32 v58, 4, v58
    v_lshl_or_b32 v58, v{vL}, 7, v58
    v_xor_b32 v59, 16, v58""")
    for p_ in range(2):
        for j in range(2): e(f"ds_write_b128 v{58+p_}, {vr(WJ[2*p_+j],4)} offset:{32768+8192*j}")
    e(f"""v_lshrrev_b32 v58, 3, v{vL}
    v_xor_b32 v59, v58, v57
    v_lshlrev_b32 v59, 4, v59
    v_lshl_or_b32 v59, v58, 7, v59
    s_lshl_b32 s7, s{sW}, 12
    v_add_u32 v59, s7, v59
    v_lshlrev_b32 v57, 4, v57
    v_lshl_or_b32 v57, v58, 13, v57
    s_waitcnt lgkmcnt(0)
    s_barrier""")
    for m in range(4): e(f"ds_read_b128 {vr(WJ[m],4)}, v59 offset:{32768+1024*m}")
    D=3;L=2
    def reads(ks):
        for nt in range(2): e(f"ds_read_b128 {vr(32+8*(ks%D)+4*nt,4)}, v{vT0} offset:{ks*2048+nt*1024}")
    for ks in range(L): reads(ks)
    ns=0
    for ks in range(16):
        if ks%4==0:
            e(f"s_waitcnt vmcnt({28-2*ks+ns})"); xpose4(e,ks,(10,14))
            e(f"s_waitcnt vmcnt({24-2*ks+ns})"); xpose4(e,ks+16,(10,14)); e("s_nop 0")
        e(f"s_waitcnt lgkmcnt({2*min(L-1,15-ks)})")
        if 10<=ks<14:
            e(f"buffer_store_dwordx4 {vr(WJ[ks-10],4)}, v57, {sr(SRD_Y,4)}, s52 offen {WT1}\ns_add_u32 s52, s52, {8*8192}"); ns+=1
        if ks==14:
            e(f"v_lshlrev_b32 v57, 2, v{vL}\ns_mov_b64 exec, 0xff\nbuffer_store_dword v56, v57, {sr(SRD_Y,4)}, s51 offen\ns_mov_b64 exec, -1"); ns+=1
        for hf in range(2):
            for nt in range(2):
                a=vr(ACC+16*nt+32*hf,16)
                e(f"{MF32} {a}, {vr(P0+4*(ks+16*hf),4)}, {vr(32+8*(ks%D)+4*nt,4)}, {a if ks else 0}")
        if ks+L<16: reads(ks+L)
    seg64_st(e,12)
    e(f"""    s_lshl_b32 s44, s5, 18
    s_lshl_b32 s45, s6, 6
    s_add_u32 s44, s44, s45
    s_add_u32 s45, s44, 0x20000
    s_nop 7""")
    for nt in range(2):
        for i in range(16): e(f"v_fma_f32 v{ACC+16*nt+i}, v{ACC+32+16*nt+i}, v{18+nt}, v{ACC+16*nt+i}")
        store64(e,ACC+16*nt,SRD_O,44+nt,12,32+8*nt,WY)
    wg_end(e,0)
    e("s_endpgm")
    e("K1_tab:")
    srd(e,SRD_O,78,WS_TB,4*26*1024)
    R=14;G=15;A64=16;A32=18;F=20
    e(f"""v_and_b32 v{R}, 15, v{vL}
    v_lshrrev_b32 v{G}, 4, v{vL}
    v_lshlrev_b32 v{vST}, 4, v{vL}
    s_mul_i32 s44, s{sW}, {26*1024}
    s_lshr_b32 s5, s{sW}, 1
    s_and_b32 s4, s{sW}, 1
    s_lshl_b32 s6, s5, 5
    v_and_b32 v{vA}, 12, v{R}
    v_and_b32 v{vB}, 3, v{R}
    v_lshl_add_u32 v{vA}, v{vA}, 1, v{vB}
    v_add_u32 v{vA}, s6, v{vA}
    v_cvt_f32_u32 v{A64}, v{vA}
    v_add_f32 v{A64+1}, 4.0, v{A64}
    v_cvt_f32_u32 v{A32}, v{R}
    v_add_f32 v{A32+1}, {fhex(16.0)}, v{A32}
    v_cvt_f32_u32 v{F}, v{G}""")
    cnt=[0]
    def st(reg):
        e(f"s_add_u32 s45, s44, {1024*cnt[0]}\nbuffer_store_dwordx4 {vr(reg,4)}, v{vST}, {sr(SRD_O,4)}, s45 offen"); cnt[0]+=1
    def sec(j): e(f"s_cmp_lg_u32 s2, {256+j}\ns_cbranch_scc1 K1_t{cnt[0]}"); return f"K1_t{cnt[0]}:"
    rb=[64]
    def nreg(n):
        r=rb[0]; rb[0]+=n; return r
    for t in range(2):
        for ks in range(2):
            lab=sec(2*t+ks)
            e(f"""v_mul_f32 v21, {fhex(1/64)}, v{A64+t}
            v_mul_f32 v22, {fhex(8.0)}, v{F}
            v_add_f32 v22, {fhex(32.0*ks)}, v22
            v_mul_f32 v22, v22, v21
            v_fract_f32 v22, v22""")
            c=nreg(12)
            trig8(e,c,22,21,range(8),"v_cos_f32",32); trig8(e,c+4,22,21,range(8),"v_sin_f32",40,c+8)
            st(c);st(c+4);st(c+8);e(lab)
    for t in range(2):
        lab=sec(t)
        e(f"""v_mul_f32 v21, {fhex(1/32)}, v{A32+t}
        v_mul_f32 v22, 4.0, v{F}
        v_mul_f32 v22, v22, v21
        v_fract_f32 v22, v22""")
        c=nreg(12); o=[0,1,2,3,16,17,18,19]
        trig8(e,c,22,21,o,"v_cos_f32",32); trig8(e,c+4,22,21,o,"v_sin_f32",40,c+8)
        st(c);st(c+4);st(c+8);e(lab)
    for tw in range(2):
        e(f"""s_lshl_b32 s6, s{4 if tw==0 else sW}, 4
        v_lshl_add_u32 v23, v{G}, 2, s6
        v_cvt_f32_u32 v23, v23""")
        for t in range(2):
            lab=sec(2+t)
            e(f"v_mul_f32 v21, {fhex(1/2048)}, v{(A64 if tw==0 else A32)+t}\nv_mul_f32 v22, v21, v23")
            c=nreg(8)
            for i in range(4):
                e(f"v_cos_f32 v{c+i}, v22\nv_sin_f32 v{c+4+i}, v22")
                if i<3: e("v_add_f32 v22, v22, v21")
            if tw==1:
                e("s_nop 0")
                for i in range(8): e(f"v_mul_f32 v{c+i}, {fhex(1/2048)}, v{c+i}")
            e("s_nop 0");st(c);st(c+4);e(lab)
    assert cnt[0]==26
    wg_end(e,0)
    e("K1_exit:\ns_endpgm")
def k3(e):
    header(e,"k3_kernel")
    e(f"""s_cmp_ge_u32 s2, 256
    s_cbranch_scc1 K3_exit
    s_load_dwordx2 s[66:67], s[0:1], 32
    s_load_dwordx2 s[76:77], s[0:1], 64
    s_load_dwordx2 s[78:79], s[0:1], 80""")
    wg_start(e)
    prolog_ids(e)
    e(f"""s_bfe_u32 s6, s2, 0x20001
    s_lshr_b32 s7, s2, 3
    s_waitcnt lgkmcnt(0)""")
    srd(e,SRD_O,76,0,4*MB)
    e(f"""s_bitcmp1_b32 s2, 0
    s_cbranch_scc1 K3_b
    s_and_b32 s4, s7, 3
    s_lshl_b32 s6, s6, 2
    s_add_u32 s4, s4, s6
    s_bfe_u32 s5, s7, 0x30002""")
    srd(e,SRD_P,78,WS_O,2*MB); srd(e,SRD_S,66,0,512*1024)
    proj(e,"K3A",False)
    e(f"""K3_b:
    s_and_b32 s4, s7, 7
    s_lshl_b32 s6, s6, 3
    s_add_u32 s4, s4, s6
    s_bfe_u32 s5, s7, 0x20003
    s_lshl_b32 s5, s5, 2
    s_add_u32 s5, s5, s{sW}""")
    srd(e,SRD_P,78,WS_G,512*1024); srd(e,SRD_S,78,WS_ZT,2*MB)
    s_dma_voff(e,12); tr_addrs(e,False)
    e(f"""v_lshlrev_b32 v{vPO}, 4, v{vL}
    s_lshl_b32 s44, s5, 15
    s_lshl_b32 s45, s4, 7
    s_lshr_b32 s53, s5, 2
    s_add_u32 s53, s53, s4
    s_and_b32 s53, s53, {3 if ROT&8 else 0}""")
    Ld=load_list(e,4096,True,False,45,44); pre_loads(e,Ld)
    main_tr(e,True,Ld,None,False)
    seg64_st(e,16)
    e(f"""    s_lshl_b32 s44, s4, 11
    s_lshl_b32 s45, s5, 6
    s_add_u32 s44, s44, s45
    s_add_u32 s44, s44, 1024
    s_add_u32 s45, s44, {2*MB}
    s_nop 7""")
    for nt in range(2): store64(e,ACC+16*nt,SRD_O,44+nt,16,32+8*nt,WO)
    wg_end(e,2)
    e("K3_exit:\ns_endpgm")
```

```python
from gen_common import *
L_V=65536; L_ONE=131072; L_E1=135168; L_E2=145408; L_END=154624
WT=os.environ.get('WT','sc0 sc1')
WT2=os.environ.get('WT2','sc0 sc1')
def attn(e):
    Q=4; VA=8; KA=9; VS=10; S=[16,32]; O=48; P=64; KB=[72,76]; VB=[80,88]
    SQ=8; SK=12; SO=16
    srd(e,SQ,78,WS_Q,2*MB); srd(e,SK,78,WS_KF,131072); srd(e,SO,78,WS_O,2*MB)
    e(f"""v_lshlrev_b32 v11, 4, v2
    v_lshl_or_b32 v11, v3, 5, v11
    s_lshl_b32 s6, s2, 3
    s_add_u32 s6, s6, s3
    s_lshl_b32 s6, s6, 10
    buffer_load_dwordx4 {vr(Q,4)}, v11, {sr(SQ,4)}, s6 offen
    v_lshlrev_b32 v{KA}, 4, v1
    s_lshl_b32 s40, s3, 10""")
    def chunk():
        e(f"""s_mov_b32 m0, s40
        s_add_u32 s41, s40, 0x10000
        buffer_load_dwordx4 v{KA}, {sr(SK,4)}, s40 offen lds
        s_mov_b32 m0, s41
        s_add_u32 s40, s40, 8192
        buffer_load_dwordx4 v{KA}, {sr(SK,4)}, s41 offen lds""")
    for c in range(3): chunk()
    e(f"""v_mov_b32 v12, 0x3f803f80
    v_mov_b32 v13, 0x3f803f80
    s_lshl_b32 s7, s3, 9
    s_add_u32 s7, s7, {L_ONE}
    v_lshl_add_u32 v14, v1, 3, s7
    ds_write_b64 v14, v[12:13]
    v_lshlrev_b32 v14, 4, v3
    v_lshl_or_b32 v14, v2, 8, v14
    v_add_u32 v14, {L_V}, v14
    v_cmp_gt_u32 vcc, 16, v3
    v_mov_b32 v15, {L_ONE}
    v_mov_b32 v12, 0x1000
    v_cndmask_b32 v{VA}, v15, v14, vcc
    v_cndmask_b32 v{VS}, 0, v12, vcc
    s_waitcnt vmcnt(4) lgkmcnt(0)
    s_barrier""")
    def rdK(t): e(f"ds_read_b128 {vr(KB[t&1],4)}, v{KA} offset:{t*1024}")
    def rdV(t):
        if t and t%4==0: e(f"v_add_u32 v{VA}, v{VA}, v{VS}")
        for s in range(2): e(f"ds_read_b128 {vr(VB[t&1]+4*s,4)}, v{VA} offset:{(t&3)*1024+s*512}")
    def qk(t): e(f"{MF32} {vr(S[t&1],16)}, {vr(KB[t&1],4)}, {vr(Q,4)}, 0")
    def pv(t,s): e(f"{MF32} {vr(O,16)}, {vr(VB[t&1]+4*s,4)}, {vr(P+4*s,4)}, {vr(O,16) if (t or s) else 0}")
    stamp(e,8,100,3,0)
    rdK(0); rdK(1); rdV(0)
    e("s_waitcnt lgkmcnt(3)"); qk(0); e("s_nop 7\ns_nop 3")
    for t in range(64):
        s=S[t&1]
        ex=lambda i: e(f"v_exp_f32 v{s+i}, v{s+i}")
        cv=lambda i: e(f"v_cvt_pk_bf16_f32 v{P+i}, v{s+2*i}, v{s+2*i+1}")
        if (t+2)%8==0 and t+2<64:
            c=(t+2)//8
            e(f"s_waitcnt vmcnt({2 if c<7 else 0}) lgkmcnt(0)\ns_barrier")
            if c+2<8: chunk()
        else: e("s_waitcnt lgkmcnt(0)")
        if t%8==7: stamp(e,9+t//8,100,3,0)
        if t+1<64: qk(t+1)
        if t+2<64: rdK(t+2)
        for i in range(4): ex(i)
        if t: pv(t-1,1)
        if t+1<64: rdV(t+1)
        cv(0);ex(4);ex(5);cv(1);ex(6);ex(7);cv(2);ex(8);cv(3);ex(9);ex(10)
        pv(t,0)
        ex(11);cv(4);ex(12);ex(13);cv(5);ex(14);ex(15);cv(6);cv(7)
    e("s_nop 1"); pv(63,1)
    e(f"""s_mov_b32 s42, {fhex(2.0**-40)}
    s_mov_b32 s43, {fhex(2.0**40)}
    s_nop 7
    s_nop 3
    v_cmp_le_f32 vcc, s42, v{O+8}
    v_cmp_ge_f32 s[44:45], s43, v{O+8}
    s_and_b64 vcc, vcc, s[44:45]
    s_cmp_eq_u64 vcc, -1
    s_cbranch_scc0 K2_fb
    K2_fin:
    v_rcp_f32 v12, v{O+8}
    s_nop 0""")
    for i in range(8): e(f"v_mul_f32 v{O+i}, v12, v{O+i}")
    for i in range(4): e(f"v_cvt_pk_bf16_f32 v{P+i}, v{O+2*i}, v{O+2*i+1}")
    e(f"""v_and_b32 v12, 7, v1
    v_xor_b32 v13, s3, v12
    v_lshlrev_b32 v13, 4, v13
    v_lshl_or_b32 v13, v1, 7, v13
    v_add_u32 v13, {L_E1}, v13
    ds_write_b128 v13, {vr(P,4)}
    v_lshrrev_b32 v14, 3, v1
    v_xor_b32 v13, v14, v12
    v_lshlrev_b32 v13, 4, v13
    v_lshl_or_b32 v13, v14, 7, v13
    s_lshl_b32 s7, s3, 10
    s_add_u32 s7, s7, {L_E1}
    v_add_u32 v13, s7, v13
    v_lshlrev_b32 v12, 4, v12
    v_lshl_or_b32 v12, v14, 10, v12
    s_lshr_b32 s6, s2, 2
    s_lshl_b32 s6, s6, 15
    s_and_b32 s7, s2, 3
    s_lshl_b32 s7, s7, 7
    s_add_u32 s6, s6, s7
    s_and_b32 s7, s3, 3
    s_lshl_b32 s7, s7, 13
    s_add_u32 s6, s6, s7
    s_lshr_b32 s7, s3, 2
    s_lshl_b32 s7, s7, 9
    s_add_u32 s6, s6, s7
    s_waitcnt lgkmcnt(0)
    s_barrier
    ds_read_b128 {vr(P,4)}, v13
    s_waitcnt lgkmcnt(0)
    buffer_store_dwordx4 {vr(P,4)}, v12, {sr(SO,4)}, s6 offen {WT2}""")
    stamp(e,17,100,3,0); stamp(e,18,100,3,0,True); wg_end(e,1); e("s_endpgm")
    e(f"""K2_fb:
    v_mov_b32 v12, 0xff800000
    v_mov_b32 v13, v{KA}
    s_mov_b32 s46, 64
    K2_fb1:
    ds_read_b128 {vr(KB[0],4)}, v13
    v_add_u32 v13, 0x400, v13
    s_waitcnt lgkmcnt(0)
    {MF32} {vr(S[0],16)}, {vr(KB[0],4)}, {vr(Q,4)}, 0
    s_nop 7
    s_nop 7""")
    for i in range(8): e(f"v_max3_f32 v12, v12, v{S[0]+2*i}, v{S[0]+2*i+1}")
    e(f"""s_sub_u32 s46, s46, 1
    s_cmp_lg_u32 s46, 0
    s_cbranch_scc1 K2_fb1
    v_xor_b32 v13, 32, v1
    v_lshlrev_b32 v13, 2, v13
    ds_bpermute_b32 v13, v13, v12
    s_waitcnt lgkmcnt(0)
    v_max_f32 v12, v12, v13""")
    for i in range(16): e(f"v_sub_f32 v{S[1]+i}, 0, v12\nv_mov_b32 v{O+i}, 0")
    e(f"""v_mov_b32 v13, v{KA}
    v_cndmask_b32 v{VA}, v15, v14, s[48:49]
    v_lshrrev_b32 v{VS}, 2, v{VS}
    s_mov_b32 s46, 64
    K2_fb2:
    ds_read_b128 {vr(KB[0],4)}, v13
    ds_read_b128 {vr(VB[0],4)}, v{VA}
    ds_read_b128 {vr(VB[0]+4,4)}, v{VA} offset:512
    v_add_u32 v13, 0x400, v13
    v_add_u32 v{VA}, v{VA}, v{VS}
    s_waitcnt lgkmcnt(0)
    {MF32} {vr(S[0],16)}, {vr(KB[0],4)}, {vr(Q,4)}, {vr(S[1],16)}
    s_nop 7
    s_nop 7""")
    for i in range(16): e(f"v_exp_f32 v{S[0]+i}, v{S[0]+i}")
    e("s_nop 0")
    for i in range(8): e(f"v_cvt_pk_bf16_f32 v{P+i}, v{S[0]+2*i}, v{S[0]+2*i+1}")
    e("s_nop 1")
    for s in range(2): e(f"{MF32} {vr(O,16)}, {vr(VB[0]+4*s,4)}, {vr(P+4*s,4)}, {vr(O,16)}")
    e(f"""s_sub_u32 s46, s46, 1
    s_cmp_lg_u32 s46, 0
    s_cbranch_scc1 K2_fb2
    s_nop 7
    s_nop 7
    s_branch K2_fin""")
def fft(e):
    D64=16; D32=64; TW1=88; TW2=104; X=120; A=136; T=152
    R=4; G=5; vX=6; vE1w=7; vE1r=8; vE2w=9; vE2r=10; vW=11; vZ=12
    SY=8; SYI=12; SZ=16; SZI=20; ST=24; SWR=28; SWI=32; SG=36
    C64=lambda t,ks,k: vr(D64+12*(2*t+ks)+4*k,4)
    C32=lambda t,k: vr(D32+12*t+4*k,4)
    srd(e,SY,78,WS_YT,2*MB); srd(e,SYI,78,WS_YT,2*MB); srd(e,SZ,78,WS_ZT,2*MB); srd(e,SZI,78,WS_ZT,2*MB)
    srd(e,ST,78,WS_TB,4*26*1024); srd(e,SWR,78,WS_WT,257*8192); srd(e,SG,78,WS_G,512*1024)
    e(f"""s_sub_u32 s3, s3, 8
    s_and_b32 s4, s3, 1
    s_lshr_b32 s5, s3, 1
    s_and_b32 s6, s2, 7
    s_lshl_b32 s6, s6, 5
    s_lshr_b32 s7, s2, 3
    s_add_u32 s6, s6, s7
    s_lshl_b32 s40, s6, 13
    s_add_u32 s41, s40, 4096
    s_lshl_b32 s42, s6, 13
    s_lshl_b32 s7, s3, 11
    s_add_u32 s42, s42, s7
    s_cmp_eq_u32 s6, 0
    s_cselect_b32 s{SYI+2}, 0, s{SYI+2}
    s_cselect_b32 s{SZI+2}, 0, s{SZI+2}
    s_cselect_b32 s47, 1, 0
    v_and_b32 v{R}, 15, v1
    v_lshrrev_b32 v{G}, 4, v1
    s_lshl_b32 s7, s4, 11
    v_lshlrev_b32 v13, 4, v{G}
    v_lshl_add_u32 v{vX}, v{R}, 7, v13
    v_add_u32 v{vX}, s7, v{vX}""")
    def ldx():
        for p in range(2):
            for ks in range(2): e(f"buffer_load_dwordx4 {vr(X+8*p+4*ks,4)}, v{vX}, {sr(SYI if p else SY,4)}, s{40+p} offen offset:{64*ks}")
    WB=X+8
    def ldw():
        for t in range(2): e(f"buffer_load_dwordx4 {vr(WB+4*t,4)}, v14, {sr(SWR,4)}, s42 offen offset:{1024*t}")
    e(f"s_mul_i32 s43, s3, {26*1024}\nv_lshlrev_b32 v14, 4, v1")
    e(f"""s_lshl_b32 s7, s5, 6
    v_add_u32 v{vZ}, s7, v{vX}
    v_and_b32 v15, 12, v{R}
    v_and_b32 v{vW}, 3, v{R}
    v_lshl_add_u32 v15, v15, 1, v{vW}
    s_lshl_b32 s7, s5, 5
    v_add_u32 v15, s7, v15
    v_mul_u32_u24 v15, 80, v15
    s_lshl_b32 s7, s4, 3
    s_add_u32 s7, s7, {L_E1}
    v_add3_u32 v{vE1w}, v15, v13, s7
    s_lshl_b32 s7, s3, 4
    v_add_u32 v15, s7, v{R}
    v_mul_u32_u24 v{vE1r}, 80, v15
    v_add_u32 v{vE1r}, {L_E1}, v{vE1r}
    v_add_u32 v{vE1r}, v{vE1r}, v13
    v_mul_u32_u24 v15, 144, v{R}
    s_lshl_b32 s7, s3, 5
    s_add_u32 s7, s7, {L_E2}
    v_lshl_add_u32 v{vE2w}, v{G}, 3, s7
    v_add_u32 v{vE2w}, v{vE2w}, v15
    s_mul_i32 s7, s4, {16*144}
    s_add_u32 s7, s7, {L_E2}
    v_add3_u32 v{vE2r}, v15, v13, s7""")
    e(f"""s_cmp_ge_u32 s3, 2
    s_cbranch_scc1 K2_nog
    s_lshl_b32 s7, s2, 1
    s_add_u32 s7, s7, s3
    s_lshl_b32 s44, s7, 10
    s_and_b32 s45, s7, 31
    s_lshr_b32 s7, s7, 5
    s_lshl_b32 s7, s7, 5
    s_lshl_b32 s45, s45, 3""")
    swap23(e,A,3,A+1)
    e(f"""v_add_u32 v{A}, s7, v{A}
    v_cvt_f32_u32 v{A}, v{A}
    v_lshl_add_u32 v{A+1}, v2, 2, s45
    v_cmp_eq_u32 vcc, 0, v{A+1}
    v_cvt_f32_u32 v{A+1}, v{A+1}
    v_mul_f32 v{A+2}, {fhex(1/512)}, v{A}
    v_mul_f32 v{A+3}, v{A+2}, v{A+1}
    v_fract_f32 v{A+3}, v{A+3}
    v_mul_f32 v{A+4}, 0.5, v{A}
    v_mov_b32 v{A+5}, {fhex(1/256)}
    v_mov_b32 v{A+6}, {fhex(1/512)}
    v_cndmask_b32 v{A+6}, v{A+5}, v{A+6}, vcc""")
    for q in range(4):
        e(f"v_add_f32 v{T+2*q+1}, 0x3e800000, v{A+3}")
        if q==0: e(f"v_fract_f32 v{A+4}, v{A+4}\nv_cndmask_b32 v{T+1}, v{T+1}, v{A+4}, vcc")
        e(f"v_cos_f32 v{T+2*q}, v{A+3}\nv_cos_f32 v{T+2*q+1}, v{T+2*q+1}")
        if q<3: e(f"v_add_f32 v{A+3}, v{A+3}, v{A+2}")
    e("s_nop 0")
    for j in range(8): e(f"v_mul_f32 v{T+j}, v{A+6 if j<2 else A+5}, v{T+j}")
    for q in range(4): e(f"v_cvt_pk_bf16_f32 v{T+8+q}, v{T+2*q}, v{T+2*q+1}")
    e(f"""buffer_store_dwordx4 {vr(T+8,4)}, v14, {sr(SG,4)}, s44 offen {WT}
    K2_nog:
    s_barrier""")
    ldx()
    order=list(range(12))+list(range(18,22))+list(range(12,18))+list(range(22,26))
    for f in order:
        e(f"s_add_u32 s44, s43, {f*1024}\nbuffer_load_dwordx4 {vr(D64+4*f,4)}, v14, {sr(ST,4)}, s44 offen")
    e("s_barrier\ns_waitcnt vmcnt(10)\nK2_col:")
    def cmul(t,c,s,sign):
        for i in range(4):
            ar=A+4*t+i; ai=A+8+4*t+i
            e(f"v_mul_f32 v{T+4*t+i}, v{ar}, v{c+i}\nv_mul_f32 v{T+8+4*t+i}, v{ai}, v{c+i}")
            e(f"v_fma_f32 v{T+4*t+i}, {'-' if sign>0 else ''}v{ai}, v{s+i}, v{T+4*t+i}")
            e(f"v_fma_f32 v{T+8+4*t+i}, {'' if sign>0 else '-'}v{ar}, v{s+i}, v{T+8+4*t+i}")
    def pack(src):
        for i in range(8): e(f"v_cvt_pk_bf16_f32 v{X+i}, v{src+2*i}, v{src+2*i+1}")
    xr=lambda ks: vr(X+4*ks,4); xi=lambda ks: vr(X+8+4*ks,4)
    ar=lambda t: vr(A+4*t,4); ai=lambda t: vr(A+8+4*t,4)
    for ks in range(2):
        for t in range(2):
            e(f"{MF16} {ar(t)}, {xr(ks)}, {C64(t,ks,0)}, {ar(t) if ks else 0}\n{MF16} {ai(t)}, {xi(ks)}, {C64(t,ks,0)}, {ai(t) if ks else 0}")
        for t in range(2):
            e(f"{MF16} {ar(t)}, {xi(ks)}, {C64(t,ks,1)}, {ar(t)}\n{MF16} {ai(t)}, {xr(ks)}, {C64(t,ks,2)}, {ai(t)}")
    e("s_nop 7")
    ldw()
    for t in range(2): cmul(t,TW1+8*t,TW1+8*t+4,-1)
    pack(T)
    for p in range(2):
        for t in range(2): e(f"ds_write_b64 v{vE1w}, {vr(X+4*p+2*t,2)} offset:{p*5120+t*320}")
    e(f"""s_waitcnt lgkmcnt(0)
    s_barrier
    ds_read_b128 {vr(X,4)}, v{vE1r}
    ds_read_b128 {vr(X+4,4)}, v{vE1r} offset:5120
    s_waitcnt vmcnt(0) lgkmcnt(0)""")
    ur=vr(X,4); ui=vr(X+4,4)
    for t in range(2): e(f"{MF16} {ar(t)}, {C32(t,0)}, {ur}, 0\n{MF16} {ai(t)}, {C32(t,0)}, {ui}, 0")
    for t in range(2): e(f"{MF16} {ar(t)}, {C32(t,1)}, {ui}, {ar(t)}\n{MF16} {ai(t)}, {C32(t,2)}, {ur}, {ai(t)}")
    for i in range(8): e(f"v_lshlrev_b32 v{T+i}, 16, v{WB+i}\nv_and_b32 v{WB+i}, 0xffff0000, v{WB+i}")
    e("s_nop 1")
    for t in range(2):
        for i in range(4):
            a=A+4*t+i; b=A+8+4*t+i; wr=T+4*t+i; wi=WB+4*t+i
            e(f"""v_mul_f32 v13, v{b}, v{wi}
            v_mul_f32 v{wi}, v{a}, v{wi}
            v_fma_f32 v{a}, v{a}, v{wr}, -v13
            v_fma_f32 v{b}, v{b}, v{wr}, v{wi}""")
    pack(A)
    e("s_nop 1")
    for t in range(2): e(f"{MF16} {ar(t)}, {ur}, {C32(t,0)}, 0\n{MF16} {ai(t)}, {ui}, {C32(t,0)}, 0")
    for t in range(2): e(f"{MF16} {ar(t)}, {ui}, {C32(t,2)}, {ar(t)}\n{MF16} {ai(t)}, {ur}, {C32(t,1)}, {ai(t)}")
    e("s_nop 7")
    for t in range(2): cmul(t,TW2+8*t,TW2+8*t+4,1)
    pack(T)
    for p in range(2):
        for t in range(2): e(f"ds_write_b64 v{vE2w}, {vr(X+4*p+2*t,2)} offset:{p*4608+t*16*144}")
    e("s_waitcnt lgkmcnt(0)\ns_barrier")
    for p in range(2):
        for ks in range(2): e(f"ds_read_b128 {vr(X+8*p+4*ks,4)}, v{vE2r} offset:{p*4608+ks*64}")
    e("s_waitcnt lgkmcnt(0)")
    for ks in range(2):
        for t in range(2):
            e(f"{MF16} {ar(t)}, {C64(t,ks,0)}, {xr(ks)}, {ar(t) if ks else 0}\n{MF16} {ai(t)}, {C64(t,ks,0)}, {xi(ks)}, {ai(t) if ks else 0}")
        for t in range(2):
            e(f"{MF16} {ar(t)}, {C64(t,ks,2)}, {xi(ks)}, {ar(t)}\n{MF16} {ai(t)}, {C64(t,ks,1)}, {xr(ks)}, {ai(t)}")
    e("s_nop 7")
    for i in range(8): e(f"v_cvt_pk_bf16_f32 v{T+i}, v{A+2*i}, v{A+2*i+1}")
    e(f"""buffer_store_dwordx4 {vr(T,4)}, v{vZ}, {sr(SZ,4)}, s40 offen {WT}
    buffer_store_dwordx4 {vr(T+4,4)}, v{vZ}, {sr(SZI,4)}, s41 offen {WT}
    s_cmp_eq_u32 s47, 0
    s_cbranch_scc1 K2_exit
    s_mov_b32 s47, 0
    s_mov_b32 s40, 4096
    s_add_u32 s42, s42, {256*8192}""")
    ldx()
    e("s_waitcnt vmcnt(0)\ns_branch K2_col")
def k2(e):
    header(e,"k2_kernel")
    wg_start(e)
    e(f"""s_cmp_ge_u32 s2, 256
    s_cbranch_scc1 K2_exit
    s_load_dwordx2 s[78:79], s[0:1], 80
    v_lshrrev_b32 v4, 6, v0
    v_and_b32 v1, 63, v0
    v_readfirstlane_b32 s3, v4
    v_lshrrev_b32 v2, 5, v1
    v_and_b32 v3, 31, v1
    v_cmp_gt_u32 s[48:49], 16, v3
    s_waitcnt lgkmcnt(0)
    s_cmp_ge_u32 s3, 8
    s_cbranch_scc1 K2_fft""")
    stamp_init(e)
    attn(e)
    e("K2_fft:")
    fft(e)
    e("K2_exit:\ns_endpgm")
```

```python
from gen_common import *
P0=128; ACC=64; SF=32
vL=1; vH=2; vN=3; vPO=4; vSO=5; vT0=6; vT1=7; vKV=8; vST=9; vA=10; vB=11; vC=12; vD=13
sW=3
SRD_P=8; SRD_S=12; SRD_O=16; SRD_X=20; SRD_Y=24
def prolog_ids(e):
    e(f"""v_lshrrev_b32 v{vA}, 6, v0
    v_and_b32 v{vL}, 63, v0
    v_readfirstlane_b32 s{sW}, v{vA}
    v_lshrrev_b32 v{vH}, 5, v{vL}
    v_and_b32 v{vN}, 31, v{vL}""")
def s_dma_voff(e,rowstride_log2):
    e(f"""v_lshrrev_b32 v{vA}, 2, v{vL}
    v_and_b32 v{vA}, 4, v{vA}
    v_xor_b32 v{vA}, v{vA}, v{vL}
    v_and_b32 v{vA}, 7, v{vA}
    v_lshlrev_b32 v{vA}, 4, v{vA}
    v_lshrrev_b32 v{vB}, 3, v{vL}
    v_lshl_or_b32 v{vSO}, v{vB}, {rowstride_log2}, v{vA}""")
def tr_addrs(e,swap,seg=False):
    e(f"""v_and_b32 v{vA}, 3, v{vL}""")
    if swap: e(f"""v_lshrrev_b32 v{vB}, 1, v{vA}
    v_and_b32 v{vA}, 1, v{vA}
    v_lshl_or_b32 v{vA}, v{vA}, 1, v{vB}""")
    e(f"""v_lshlrev_b32 v{vA}, 3, v{vA}
    v_bfe_u32 v{vB}, v{vL}, 2, 2
    v_lshl_or_b32 v{vKV}, v{vB}, 5, v{vA}
    v_lshl_or_b32 v{vKV}, v{vH}, 10, v{vKV}
    v_add_u32 v{vKV}, 0x10000, v{vKV}
    v_lshl_or_b32 v{vA}, v{vB}, 7, v{vA}
    v_lshl_or_b32 v{vA}, v{vH}, {12 if seg else 10}, v{vA}
    v_bfe_u32 v{vB}, v{vL}, 4, 1
    v_lshl_or_b32 v{vA}, v{vB}, 5, v{vA}
    v_bfe_u32 v{vB}, v{vL}, 3, 1
    v_lshl_or_b32 v{vT0}, v{vB}, 6, v{vA}
    v_xor_b32 v{vT1}, 64, v{vT0}""")
def seg128_addr(e,d,rowlog,swap=False):
    e(f"v_and_b32 v{vB}, 7, v{vL}")
    if swap: e(f"v_and_b32 v{vC}, 4, v{vL}\nv_add_u32 v{vB}, v{vB}, v{vC}")
    e(f"""v_bfe_u32 v{vA}, v{vL}, 3, 2
    v_lshlrev_b32 v{vA}, 5, v{vA}
    v_lshl_or_b32 v{vA}, v{vH}, 4, v{vA}
    v_lshl_or_b32 v{d}, v{vB}, {rowlog}, v{vA}""")
def xpose4(e,ks,T,base=P0):
    R=[base+4*(ks+q) for q in range(4)]
    for a in range(2):
        for i in range(4): e(f"v_mov_b32_dpp v{T[a]+i}, v{R[2*a]+i} row_ror:8 row_mask:0xf bank_mask:0xf")
    for a in range(2):
        for i in range(4): e(f"v_mov_b32_dpp v{R[2*a]+i}, v{R[2*a+1]+i} row_ror:8 row_mask:0xf bank_mask:0xc")
    for a in range(2):
        for i in range(4): e(f"v_mov_b32_dpp v{R[2*a+1]+i}, v{T[a]+i} quad_perm:[0,1,2,3] row_mask:0xf bank_mask:0x3")
    for a in range(2):
        for i in range(4): e(f"v_permlane16_swap_b32 v{R[a]+i}, v{R[a+2]+i}")
def quad_addr(e,d,rowlog,swap=False):
    e(f"v_and_b32 v{vB}, 14, v{vL}")
    if swap: swap23(e,vC,vB,vA); e(f"v_mov_b32 v{vB}, v{vC}")
    e(f"""v_lshrrev_b32 v{vA}, 4, v{vL}
    v_lshlrev_b32 v{vA}, 5, v{vA}
    v_lshl_or_b32 v{d}, v{vB}, {rowlog}, v{vA}
    v_and_b32 v{vA}, 1, v{vL}
    v_lshl_or_b32 v{d}, v{vA}, 4, v{d}""")
def odd_mask(e,m): e(f"v_and_b32 v{m}, 1, v{vL}\nv_sub_u32 v{m}, 0, v{m}")
QP=[0,1,2,3]
def xposeq(e,ks,T,M,base=P0):
    R=[base+4*(ks+q) for q in range(4)]
    dp="quad_perm:[1,0,3,2] row_mask:0xf bank_mask:0xf"
    ai=[(a,i) for a in range(2) for i in range(4)]
    for a,i in ai: e(f"v_xor_b32_dpp v{T[a]+i}, v{R[2*a+1]+i}, v{R[2*a]+i} {dp}")
    for a,i in ai: e(f"v_and_b32 v{T[a]+i}, v{M}, v{T[a]+i}")
    for a,i in ai: e(f"v_xor_b32 v{R[2*a]+i}, v{T[a]+i}, v{R[2*a]+i}")
    for a,i in ai: e(f"v_xor_b32_dpp v{R[2*a+1]+i}, v{T[a]+i}, v{R[2*a+1]+i} {dp}")
    for a,i in ai: e(f"v_permlane16_swap_b32 v{R[a]+i}, v{R[a+2]+i}")
def xlist(*a,**k):
    t=E(); xposeq(t,*a,**k); return t.l
def load_list(e,rowstride,pfrag,kv,sS,sP):
    e(f"s_lshl_b32 s40, s{sW}, 12\ns_mul_i32 s54, s{sW}, {32*rowstride}\ns_add_u32 s54, s54, s{sS}")
    if kv: e(f"s_lshl_b32 s56, s{sW}, 10\ns_add_u32 s43, s56, 0x10000\nv_lshlrev_b32 v{vD}, 4, v{vL}")
    Ld=[]
    for c in range(4):
        hd=(f"s_add_u32 s55, s53, {c}\ns_and_b32 s55, s55, 3\ns_mul_i32 s41, s55, {128*rowstride}\ns_add_u32 s41, s41, s54\n"
            f"s_lshl_b32 s57, s55, {13 if pfrag else 8}\ns_add_u32 s57, s57, s{sP}\n")
        if kv: hd+="s_lshl_b32 s42, s55, 12\ns_add_u32 s42, s42, s56\n"
        for i in range(4):
            Ld.append((hd if i==0 else "")+f"s_mov_b32 m0, s40\ns_add_u32 s40, s40, {1024 if i<3 else 16384-3072}\n"
              f"buffer_load_dwordx4 v{vSO}, {sr(SRD_S,4)}, s41 offen lds"+(f"\ns_add_u32 s41, s41, {8*rowstride}" if i<3 else ""))
        if kv:
            Ld.append(f"s_mov_b32 m0, s43\ns_add_u32 s43, s43, 4096\n"
              f"buffer_load_dwordx4 v{vD}, {sr(SRD_X,4)}, s42 offen lds")
        for k in range(8):
            ks=8*c+k
            if pfrag:
                Ld.append(f"buffer_load_dwordx4 {vr(P0+4*ks,4)}, v{vPO}, {sr(SRD_P,4)}, s57 offen offset:{(ks&3)*1024}"+(f"\ns_add_u32 s57, s57, 4096" if k==3 else ""))
            else:
                Ld.append(("s_add_u32 s58, s57, 16384\n" if k==2 else "")+f"buffer_load_dwordx4 {vr(P0+4*ks,4)}, v{vPO}, {sr(SRD_P,4)}, s{58 if k&2 else 57} offen offset:{(k>>2)*128+(k&1)*1024}")
    return Ld
ROT=int(os.environ.get('ROT','4'))
PRE=int(os.environ.get('PRE','2'))
PRE1=int(os.environ.get('PRE1','2'))
def pre_loads(e,Ld):
    global PRE
    PRE=PRE1 if len(Ld)==52 else 2
    for x in Ld[:PRE*len(Ld)//4]: e(x)
def main_tr(e,p_is_a,Ld,kv,seg,sti=None):
    per=len(Ld)//4; pre=per-8
    D=3 if kv else 4; L=D-1; nr=6 if kv else 4; st=12 if kv else 8
    base=28 if kv else 32
    done=[-1]; iss=[PRE*per]
    def issue(n):
        while iss[0]<min(n,len(Ld)): e(Ld[iss[0]]); iss[0]+=1
    def vwait(pos):
        issue(pos+1)
        if pos>done[0]:
            e(f"s_waitcnt vmcnt({iss[0]-pos-1})"); done[0]=pos
    def reads(ks):
        if ks%8==0:
            vwait(per*(ks//8)+pre-1); e("s_barrier")
            if sti is not None: stamp(e,sti+ks//8,40,3,2,vt=(14,15))
        b=base+st*(ks%D)
        for mt in range(2):
            for u in range(2):
                e(f"ds_read_b64_tr_b16 {vr(b+4*mt+2*u,2)}, v{vT0+mt} offset:{((ks>>2)*8192+(ks&3)*1024 if seg else ks*2048)+u*512}")
        if kv:
            for u in range(2): e(f"ds_read_b64_tr_b16 {vr(b+8+2*u,2)}, v{vKV} offset:{(ks>>2)*2048+(ks&3)*256+u*128}")
    XQ=[]
    for ks in range(L): reads(ks)
    for ks in range(32):
        ahead=min(L-1,31-ks)
        if seg:
            if ks==0: vwait(pre+3); xposeq(e,0,(16,20),24)
            if ks%4==0 and ks<28:
                vwait(per*((ks+4)//8)+pre+(ks+4)%8+3); XQ=xlist(ks+4,(16,20),24)
        else: vwait(per*(ks//8)+pre+ks%8)
        e(f"s_waitcnt lgkmcnt({ahead*nr})")
        b=base+st*(ks%D); p=vr(P0+4*((ks&~3)+QP[ks&3] if seg else ks),4)
        for mt in range(2):
            a=vr(ACC+16*mt,16); c=a if ks else '0'; s=vr(b+4*mt,4)
            e(f"{MF32} {a}, {p if p_is_a else s}, {s if p_is_a else p}, {c}")
            for _ in range((5 if not kv else 4-mt) if XQ else 0): e(XQ.pop(0))
        if kv:
            a=vr(ACC+32,16); c=a if ks else '0'; s=vr(b+8,4)
            e(f"{MF32} {a}, {s if kv=='K' else p}, {p if kv=='K' else s}, {c}")
            for _ in range(3 if XQ else 0): e(XQ.pop(0))
        if ks+L<32: reads(ks+L)
        issue(PRE*per+((ks+1)*per+7)//8)
def store_acc(e,acc,scale,srd_,voff,soff,off,tmp):
    if scale is not None:
        for i in range(16): e(f"v_mul_f32 v{acc+i}, {scale}, v{acc+i}")
    for i in range(8): e(f"v_cvt_pk_bf16_f32 v{tmp+i}, v{acc+2*i}, v{acc+2*i+1}")
    for j in range(2): e(f"buffer_store_dwordx4 {vr(tmp+4*j,4)}, v{voff}, {sr(srd_,4)}, {soff} offen offset:{off+32*j}")
WQ=os.environ.get('WQ','sc0 sc1'); WY=os.environ.get('WY','sc0 sc1'); WO=os.environ.get('WO','sc0 sc1')
def store128(e,scale,srd_,soff,rowlog,wt):
    for i in range(32):
        if scale is not None: e(f"v_mul_f32 v{ACC+i}, {scale}, v{ACC+i}")
    for i in range(16): e(f"v_cvt_pk_bf16_f32 v{32+i}, v{ACC+2*i}, v{ACC+2*i+1}")
    xpose4(e,0,(48,52),32)
    for q in range(4):
        e(f"buffer_store_dwordx4 {vr(32+4*q,4)}, v{vST}, {sr(srd_,4)}, s{soff} offen {wt}")
        if q<3: e(f"s_add_u32 s{soff}, s{soff}, {8<<rowlog}")
def seg64_st(e,rowlog):
    e(f"""v_and_b32 v{vB}, 15, v{vL}
    v_bfe_u32 v{vA}, v{vL}, 4, 1
    v_lshlrev_b32 v{vA}, 5, v{vA}
    v_lshl_or_b32 v{vA}, v{vH}, 4, v{vA}
    v_lshl_or_b32 v{vST}, v{vB}, {rowlog}, v{vA}""")
def store64(e,acc,srd_,soff,rowlog,tmp,wt):
    for i in range(8): e(f"v_cvt_pk_bf16_f32 v{tmp+i}, v{acc+2*i}, v{acc+2*i+1}")
    e("s_nop 1")
    for i in range(4): e(f"v_permlane16_swap_b32 v{tmp+i}, v{tmp+4+i}")
    e(f"""buffer_store_dwordx4 {vr(tmp,4)}, v{vST}, {sr(srd_,4)}, s{soff} offen {wt}
    s_add_u32 s{soff}, s{soff}, {16<<rowlog}
    buffer_store_dwordx4 {vr(tmp+4,4)}, v{vST}, {sr(srd_,4)}, s{soff} offen {wt}""")
def proj(e,pre,is_q):
    s_dma_voff(e,10); tr_addrs(e,True,is_q)
    if is_q: quad_addr(e,vPO,10); odd_mask(e,24)
    else: e(f"v_lshlrev_b32 v{vPO}, 4, v{vL}")
    e(f"""s_lshl_b32 s6, s4, 2
    s_add_u32 s6, s6, s{sW}
    s_lshl_b32 s44, s6, 15
    s_lshl_b32 s45, s5, 7
    s_add_u32 s53, s4, s5
    s_and_b32 s53, s53, {3 if (ROT&(1 if is_q else 4)) else 0}""")
    stamp_init(e)
    Ld=load_list(e,1024,not is_q,is_q,45,44); pre_loads(e,Ld)
    stamp(e,0 if is_q else 20,40,3,2,vt=(14,15))
    if is_q:
        e(f"""s_and_b32 s7, s5, 3
        s_cmp_eq_u32 s7, s{sW}
        s_cbranch_scc0 {pre}_plain
        s_cmp_lt_u32 s5, 4
        s_cbranch_scc0 {pre}_v""")
        main_tr(e,False,Ld,'K',True)
        e("s_nop 7\ns_nop 7")
        for i in range(4): e(f"v_cvt_pk_bf16_f32 v{16+i}, v{ACC+32+2*i}, v{ACC+33+2*i}")
        e(f"""v_lshlrev_b32 v{vA}, 4, v{vL}
        s_lshl_b32 s46, s6, 10
        buffer_store_dwordx4 v[16:19], v{vA}, {sr(SRD_Y,4)}, s46 offen
        s_branch {pre}_epi
        {pre}_v:""")
        main_tr(e,False,Ld,'V',True)
        e("s_nop 7\ns_nop 7")
        for i in range(8): e(f"v_cvt_pk_bf16_f32 v{16+i}, v{ACC+32+2*i}, v{ACC+33+2*i}")
        e(f"""v_lshlrev_b32 v{vA}, 4, v{vN}
        v_lshl_or_b32 v{vA}, v{vH}, 8, v{vA}
        v_cmp_gt_u32 vcc, 16, v{vN}
        s_lshl_b32 s46, s6, 10
        s_add_u32 s46, s46, 0x10000
        s_and_saveexec_b64 s[48:49], vcc
        buffer_store_dwordx4 v[16:19], v{vA}, {sr(SRD_Y,4)}, s46 offen
        buffer_store_dwordx4 v[20:23], v{vA}, {sr(SRD_Y,4)}, s46 offen offset:512
        s_mov_b64 exec, s[48:49]
        s_branch {pre}_epi
        {pre}_plain:""")
    main_tr(e,False,Ld,None,is_q,1 if is_q else 21)
    e(f"{pre}_epi:")
    if is_q: e(f"s_add_u32 s44, s44, s45\ns_mov_b32 s47, {fhex(0.25*1.4426950408889634)}")
    else: e("s_lshl_b32 s44, s44, 1\ns_add_u32 s44, s44, s45")
    seg128_addr(e,vST,10 if is_q else 11)
    e("s_nop 7")
    stamp(e,5 if is_q else 25,40,3,2,vt=(14,15))
    store128(e,'s47' if is_q else None,SRD_O,44,10 if is_q else 11,WQ if is_q else WO)
    if STAMP: e("s_waitcnt vmcnt(0)")
    stamp(e,6 if is_q else 26,40,3,2,vt=(14,15)); stamp(e,7 if is_q else 27,40,3,2,True,vt=(14,15))
    wg_end(e,0 if is_q else 2)
    e("s_endpgm")
```

```python
from gen_common import *
from gen_gemm import *
def trig8(e,dst,vA0,vS,offs,fn,tmp,neg=None):
    cst={1:'1.0',2:'2.0',4:'4.0'}
    for j,o in enumerate(offs):
        if o==0: e(f"{fn} v{tmp+j}, v{vA0}")
        else:
            if o not in cst: e(f"s_mov_b32 s60, {fhex(float(o))}")
            e(f"v_fma_f32 v{tmp+j}, v{vS}, {cst.get(o,'s60')}, v{vA0}\n{fn} v{tmp+j}, v{tmp+j}")
    e("s_nop 0")
    for i in range(4): e(f"v_cvt_pk_bf16_f32 v{dst+i}, v{tmp+2*i}, v{tmp+2*i+1}")
    if neg is not None:
        for i in range(4): e(f"v_xor_b32 v{neg+i}, 0x80008000, v{dst+i}")
def k1(e):
    header(e,"k1_kernel")
    e(f"""s_cmp_gt_u32 s2, 259
    s_cbranch_scc1 K1_exit
    s_load_dwordx8 s[64:71], s[0:1], 0
    s_load_dwordx2 s[72:73], s[0:1], 40
    s_load_dwordx4 s[80:83], s[0:1], 48
    s_load_dwordx2 s[78:79], s[0:1], 80""")
    wg_start(e)
    prolog_ids(e)
    e(f"""s_bfe_u32 s6, s2, 0x20001
    s_lshr_b32 s7, s2, 3
    s_and_b32 s4, s7, 3
    s_lshl_b32 s6, s6, 2
    s_add_u32 s4, s4, s6
    s_bfe_u32 s5, s7, 0x30002
    s_waitcnt lgkmcnt(0)
    s_cmp_ge_u32 s2, 256
    s_cbranch_scc1 K1_tab
    s_bitcmp1_b32 s2, 0
    s_cbranch_scc1 K1_b""")
    srd(e,SRD_P,64,0,2*MB); srd(e,SRD_S,66,0,512*1024); srd(e,SRD_O,78,WS_Q,2*MB); srd(e,SRD_Y,78,WS_KF,131072)
    srd(e,SRD_X,68,0,16384)
    e(f"s_cmp_lt_u32 s5, 4\ns_cbranch_scc1 K1_k\ns_mov_b32 s{SRD_X}, s70\ns_mov_b32 s{SRD_X+1}, s71\nK1_k:")
    proj(e,"K1A",True)
    e("K1_b:")
    srd(e,SRD_P,72,0,2*MB); srd(e,SRD_O,78,WS_YT,2*MB)
    srd(e,SRD_S,80,0,2048*514); srd(e,SRD_X,82,0,2048*514); srd(e,SRD_Y,78,WS_WT,257*8192)
    WJ=[20,24,28,60]
    stamp_init(e)
    WT1=os.environ.get('WT1','sc0 sc1')
    e(f"""s_lshl_b32 s7, s4, 3
    s_add_u32 s7, s7, s5
    s_and_b32 s59, s7, 1
    s_bfe_u32 s50, s7, 0x30001
    s_lshr_b32 s51, s7, 4
    s_lshl_b32 s52, s51, 7
    s_lshl_b32 s7, s50, 2
    s_add_u32 s52, s52, s7
    s_add_u32 s52, s52, s{sW}
    s_mul_i32 s52, s52, 1028
    s_lshl_b32 s7, s59, 8
    v_lshl_add_u32 v58, v{vL}, 1, s7
    v_and_b32 v59, 3, v{vL}
    v_lshrrev_b32 v57, 2, v{vL}
    v_lshl_or_b32 v59, v59, 6, v57
    v_mul_u32_u24 v59, 514, v59""")
    for p_ in range(2):
        for i in range(4):
            e(f"s_add_u32 s7, s52, {(64*i+p_)*514}")
            for j in range(2):
                e(f"buffer_load_ushort v{WJ[2*p_+j]+i}, v58, {sr(SRD_S,4)}, s7 offen offset:{128*j}")
                e(f"buffer_load_ushort v{ACC+4*(2*p_+j)+i}, v58, {sr(SRD_X,4)}, s7 offen offset:{128*j}")
    e(f"""s_mov_b64 exec, 0xff
    buffer_load_ushort v56, v59, {sr(SRD_S,4)}, s52 offen offset:512
    buffer_load_ushort v{ACC+16}, v59, {sr(SRD_X,4)}, s52 offen offset:512
    s_mov_b64 exec, -1
    s_lshr_b32 s52, s50, 1
    s_lshl_b32 s52, s52, 11
    s_and_b32 s50, s50, 1
    s_lshl_b32 s50, s50, 7
    s_add_u32 s52, s52, s50
    s_lshl_b32 s51, s51, 8
    s_add_u32 s52, s52, s51
    s_lshl_b32 s51, s{sW}, 5
    s_add_u32 s51, s51, s52
    s_add_u32 s51, s51, {256*8192}
    s_lshl_b32 s59, s59, 20
    s_add_u32 s52, s52, s59
    s_lshl_b32 s59, s{sW}, 18
    s_add_u32 s52, s52, s59""")
    quad_addr(e,vPO,15,True)
    e(f"""s_lshl_b32 s6, s4, 2
    s_add_u32 s6, s6, s{sW}
    s_and_b32 s44, s6, 1
    s_lshl_b32 s44, s44, 20
    s_lshr_b32 s45, s6, 1
    s_lshl_b32 s45, s45, 10
    s_add_u32 s44, s44, s45""")
    XL=[]
    e(f"s_lshl_b32 s53, s5, 1\ns_and_b32 s53, s53, {6 if ROT&2 else 0}")
    for j in range(4):
        for hf in range(2):
            for u in range(4):
                k=4*j+u+16*hf
                hd=f"s_add_u32 s57, s53, {2*j}\ns_and_b32 s57, s57, 7\ns_lshl_b32 s57, s57, 6\ns_add_u32 s57, s57, s44\n" if hf+u==0 else ""
                XL.append(hd+f"s_add_u32 s55, s57, {((u>>1)*16+(u&1))<<15}\nbuffer_load_dwordx4 {vr(P0+4*k,4)}, v{vPO}, {sr(SRD_P,4)}, s55 offen offset:{hf*512}")
    NX=8; NB=int(os.environ.get('NB','2')); NT=NX+8*NB
    for x in XL[:NX]: e(x)
    for nt in range(2):
        e(f"""s_lshl_b32 s7, s5, 6
        s_add_u32 s7, s7, {32*nt}
        v_add_u32 v{vA}, s7, v{vN}
        v_lshrrev_b32 v{vB}, 1, v{vA}
        v_and_b32 v{vC}, 1, v{vA}
        v_cmp_eq_u32 vcc, 1, v{vA}
        v_mov_b32 v{vD}, 0x100
        v_cvt_f32_u32 v{vC}, v{vC}
        v_cndmask_b32 v{vB}, v{vB}, v{vD}, vcc
        v_mul_f32 v{vC}, 0x3e800000, v{vC}
        v_cndmask_b32 v{16+nt}, v{vC}, 0, vcc
        v_cvt_f32_u32 v{14+nt}, v{vB}
        v_mul_f32 v{14+nt}, {fhex(1/512)}, v{14+nt}
        v_lshlrev_b32 v{vB}, 31, v{vB}
        v_or_b32 v{18+nt}, 1.0, v{vB}""")
    e(f"""s_lshl_b32 s56, s53, 1
    s_add_u32 s56, s56, s{sW}
    s_lshl_b32 s7, s{sW}, 11
    v_lshl_add_u32 v{vT1}, v{vL}, 4, s7
    v_lshlrev_b32 v{vT0}, 4, v{vL}""")
    for c in range(4):
        e(f"s_add_u32 s7, s56, {4*c}\ns_and_b32 s58, s7, 3\ns_and_b32 s7, s7, 12\ns_lshl_b32 s7, s7, 1\ns_add_u32 s7, s7, s58\ns_lshl_b32 s7, s7, 3\nv_lshl_add_u32 v0, v{vH}, 5, s7\nv_cvt_f32_u32 v0, v0")
        for nt in range(2):
            e(f"v_fma_f32 v8, v{14+nt}, v0, v{16+nt}\nv_fract_f32 v8, v8")
            tb=32+12*nt
            trig8(e,tb+8,8,14+nt,range(8),"v_cos_f32",tb)
            e(f"ds_write_b128 v{vT1}, {vr(tb+8,4)} offset:{c*8192+nt*1024}")
            q=2*c+nt
            for x in XL[NX+NB*q:NX+NB*q+NB]: e(x)
    stamp(e,28,41,3,2,vt=(57,58))
    e(f"s_waitcnt vmcnt({NT})")
    for j in range(4):
        for i in range(4): e(f"v_lshl_or_b32 v{WJ[j]+i}, v{ACC+4*j+i}, 16, v{WJ[j]+i}")
    e(f"""v_lshl_or_b32 v56, v{ACC+16}, 16, v56
    s_lshl_b32 s7, s{sW}, 1
    v_and_b32 v57, 7, v{vL}
    v_xor_b32 v58, s7, v57
    v_lshlrev_b32 v58, 4, v58
    v_lshl_or_b32 v58, v{vL}, 7, v58
    v_xor_b32 v59, 16, v58""")
    for p_ in range(2):
        for j in range(2): e(f"ds_write_b128 v{58+p_}, {vr(WJ[2*p_+j],4)} offset:{32768+8192*j}")
    e(f"""v_lshrrev_b32 v58, 3, v{vL}
    v_xor_b32 v59, v58, v57
    v_lshlrev_b32 v59, 4, v59
    v_lshl_or_b32 v59, v58, 7, v59
    s_lshl_b32 s7, s{sW}, 12
    v_add_u32 v59, s7, v59
    v_lshlrev_b32 v57, 4, v57
    v_lshl_or_b32 v57, v58, 13, v57
    s_waitcnt lgkmcnt(0)
    s_barrier""")
    for m in range(4): e(f"ds_read_b128 {vr(WJ[m],4)}, v59 offset:{32768+1024*m}")
    D=3;L=2
    def reads(ks):
        for nt in range(2): e(f"ds_read_b128 {vr(32+8*(ks%D)+4*nt,4)}, v{vT0} offset:{ks*2048+nt*1024}")
    stamp(e,29,41,3,2,vt=(58,5))
    for ks in range(L): reads(ks)
    odd_mask(e,8)
    ops=list(range(NT))
    def vw(k): e(f"s_waitcnt vmcnt({len(ops)-1-ops.index(k)})")
    for ks in range(16):
        if ks==0:
            vw(3); xposeq(e,0,(10,14),8)
            vw(7); xposeq(e,16,(10,14),8); XQ=[]
        if ks%4==0 and ks<12: vw(2*ks+11); XQ=xlist(ks+4,(10,14),8)
        if ks%4==2 and ks<12: vw(2*ks+11); XQ=xlist(ks+18,(10,14),8)
        e(f"s_waitcnt lgkmcnt({2*min(L-1,15-ks)})")
        for x in range(NT+2*ks,min(32,NT+2+2*ks)): e(XL[x]); ops.append(x)
        if 10<=ks<14:
            e(f"buffer_store_dwordx4 {vr(WJ[ks-10],4)}, v57, {sr(SRD_Y,4)}, s52 offen {WT1}\ns_add_u32 s52, s52, {8*8192}"); ops.append('s')
        if ks==14:
            e(f"v_lshlrev_b32 v57, 2, v{vL}\ns_mov_b64 exec, 0xff\nbuffer_store_dword v56, v57, {sr(SRD_Y,4)}, s51 offen\ns_mov_b64 exec, -1")
        for hf in range(2):
            for nt in range(2):
                a=vr(ACC+16*nt+32*hf,16)
                e(f"{MF32} {a}, {vr(P0+4*((ks&~3)+QP[ks&3]+16*hf),4)}, {vr(32+8*(ks%D)+4*nt,4)}, {a if ks else 0}")
                for _ in range(5 if XQ else 0): e(XQ.pop(0))
        if ks+L<16: reads(ks+L)
    stamp(e,30,41,3,2,vt=(58,5))
    seg64_st(e,12)
    e(f"""    s_lshl_b32 s44, s5, 18
    s_lshl_b32 s45, s6, 6
    s_add_u32 s44, s44, s45
    s_add_u32 s45, s44, 0x20000
    s_nop 7""")
    for nt in range(2):
        for i in range(16): e(f"v_fma_f32 v{ACC+16*nt+i}, v{ACC+32+16*nt+i}, v{18+nt}, v{ACC+16*nt+i}")
        store64(e,ACC+16*nt,SRD_O,44+nt,12,32+8*nt,WY)
    if STAMP: e("s_waitcnt vmcnt(0)")
    stamp(e,31,41,3,2,vt=(58,5))
    wg_end(e,0)
    e("s_endpgm")
    e("K1_tab:")
    srd(e,SRD_O,78,WS_TB,4*26*1024)
    R=14;G=15;A64=16;A32=18;F=20
    e(f"""v_and_b32 v{R}, 15, v{vL}
    v_lshrrev_b32 v{G}, 4, v{vL}
    v_lshlrev_b32 v{vST}, 4, v{vL}
    s_mul_i32 s44, s{sW}, {26*1024}
    s_lshr_b32 s5, s{sW}, 1
    s_and_b32 s4, s{sW}, 1
    s_lshl_b32 s6, s5, 5
    v_and_b32 v{vA}, 12, v{R}
    v_and_b32 v{vB}, 3, v{R}
    v_lshl_add_u32 v{vA}, v{vA}, 1, v{vB}
    v_add_u32 v{vA}, s6, v{vA}
    v_cvt_f32_u32 v{A64}, v{vA}
    v_add_f32 v{A64+1}, 4.0, v{A64}
    v_cvt_f32_u32 v{A32}, v{R}
    v_add_f32 v{A32+1}, {fhex(16.0)}, v{A32}
    v_cvt_f32_u32 v{F}, v{G}""")
    cnt=[0]
    def st(reg):
        e(f"s_add_u32 s45, s44, {1024*cnt[0]}\nbuffer_store_dwordx4 {vr(reg,4)}, v{vST}, {sr(SRD_O,4)}, s45 offen"); cnt[0]+=1
    def sec(j): e(f"s_cmp_lg_u32 s2, {256+j}\ns_cbranch_scc1 K1_t{cnt[0]}"); return f"K1_t{cnt[0]}:"
    rb=[64]
    def nreg(n):
        r=rb[0]; rb[0]+=n; return r
    for t in range(2):
        for ks in range(2):
            lab=sec(2*t+ks)
            e(f"""v_mul_f32 v21, {fhex(1/64)}, v{A64+t}
            v_mul_f32 v22, {fhex(8.0)}, v{F}
            v_add_f32 v22, {fhex(32.0*ks)}, v22
            v_mul_f32 v22, v22, v21
            v_fract_f32 v22, v22""")
            c=nreg(12)
            trig8(e,c,22,21,range(8),"v_cos_f32",32); trig8(e,c+4,22,21,range(8),"v_sin_f32",40,c+8)
            st(c);st(c+4);st(c+8);e(lab)
    for t in range(2):
        lab=sec(t)
        e(f"""v_mul_f32 v21, {fhex(1/32)}, v{A32+t}
        v_mul_f32 v22, 4.0, v{F}
        v_mul_f32 v22, v22, v21
        v_fract_f32 v22, v22""")
        c=nreg(12); o=[0,1,2,3,16,17,18,19]
        trig8(e,c,22,21,o,"v_cos_f32",32); trig8(e,c+4,22,21,o,"v_sin_f32",40,c+8)
        st(c);st(c+4);st(c+8);e(lab)
    for tw in range(2):
        e(f"""s_lshl_b32 s6, s{4 if tw==0 else sW}, 4
        v_lshl_add_u32 v23, v{G}, 2, s6
        v_cvt_f32_u32 v23, v23""")
        for t in range(2):
            lab=sec(2+t)
            e(f"v_mul_f32 v21, {fhex(1/2048)}, v{(A64 if tw==0 else A32)+t}\nv_mul_f32 v22, v21, v23")
            c=nreg(8)
            for i in range(4):
                e(f"v_cos_f32 v{c+i}, v22\nv_sin_f32 v{c+4+i}, v22")
                if i<3: e("v_add_f32 v22, v22, v21")
            if tw==1:
                e("s_nop 0")
                for i in range(8): e(f"v_mul_f32 v{c+i}, {fhex(1/2048)}, v{c+i}")
            e("s_nop 0");st(c);st(c+4);e(lab)
    assert cnt[0]==26
    wg_end(e,0)
    e("K1_exit:\ns_endpgm")
def k3(e):
    header(e,"k3_kernel")
    e(f"""s_cmp_ge_u32 s2, 256
    s_cbranch_scc1 K3_exit
    s_load_dwordx2 s[66:67], s[0:1], 32
    s_load_dwordx2 s[76:77], s[0:1], 64
    s_load_dwordx2 s[78:79], s[0:1], 80""")
    wg_start(e)
    prolog_ids(e)
    e(f"""s_bfe_u32 s6, s2, 0x20001
    s_lshr_b32 s7, s2, 3
    s_waitcnt lgkmcnt(0)""")
    srd(e,SRD_O,76,0,4*MB)
    e(f"""s_bitcmp1_b32 s2, 0
    s_cbranch_scc1 K3_b
    s_and_b32 s4, s7, 3
    s_lshl_b32 s6, s6, 2
    s_add_u32 s4, s4, s6
    s_bfe_u32 s5, s7, 0x30002""")
    srd(e,SRD_P,78,WS_O,2*MB); srd(e,SRD_S,66,0,512*1024)
    proj(e,"K3A",False)
    e(f"""K3_b:
    s_and_b32 s4, s7, 7
    s_lshl_b32 s6, s6, 3
    s_add_u32 s4, s4, s6
    s_bfe_u32 s5, s7, 0x20003
    s_lshl_b32 s5, s5, 2
    s_add_u32 s5, s5, s{sW}""")
    srd(e,SRD_P,78,WS_G,512*1024); srd(e,SRD_S,78,WS_ZT,2*MB)
    s_dma_voff(e,12); tr_addrs(e,False)
    e(f"""v_lshlrev_b32 v{vPO}, 4, v{vL}
    s_lshl_b32 s44, s5, 15
    s_lshl_b32 s45, s4, 7
    s_lshr_b32 s53, s5, 2
    s_add_u32 s53, s53, s4
    s_and_b32 s53, s53, {3 if ROT&8 else 0}""")
    Ld=load_list(e,4096,True,False,45,44); pre_loads(e,Ld)
    main_tr(e,True,Ld,None,False)
    seg64_st(e,16)
    e(f"""    s_lshl_b32 s44, s4, 11
    s_lshl_b32 s45, s5, 6
    s_add_u32 s44, s44, s45
    s_add_u32 s44, s44, 1024
    s_add_u32 s45, s44, {2*MB}
    s_nop 7""")
    for nt in range(2): store64(e,ACC+16*nt,SRD_O,44+nt,16,32+8*nt,WO)
    wg_end(e,2)
    e("K3_exit:\ns_endpgm")
```

```python
import os
from gen_common import *
P0=128; ACC=64; SF=32
vL=1; vH=2; vN=3; vPO=4; vSO=5; vT0=6; vT1=7; vKV=8; vST=9; vA=10; vB=11; vC=12; vD=13
sW=3
SRD_P=8; SRD_S=12; SRD_O=16; SRD_X=20; SRD_Y=24
def prolog_ids(e):
    e(f"""v_lshrrev_b32 v{vA}, 6, v0
    v_and_b32 v{vL}, 63, v0
    v_readfirstlane_b32 s{sW}, v{vA}
    v_lshrrev_b32 v{vH}, 5, v{vL}
    v_and_b32 v{vN}, 31, v{vL}""")
def s_dma_voff(e,rowstride_log2):
    e(f"""v_lshrrev_b32 v{vA}, 2, v{vL}
    v_and_b32 v{vA}, 4, v{vA}
    v_xor_b32 v{vA}, v{vA}, v{vL}
    v_and_b32 v{vA}, 7, v{vA}
    v_lshlrev_b32 v{vA}, 4, v{vA}
    v_lshrrev_b32 v{vB}, 3, v{vL}
    v_lshl_or_b32 v{vSO}, v{vB}, {rowstride_log2}, v{vA}""")
def tr_addrs(e,swap,seg=False):
    e(f"""v_and_b32 v{vA}, 3, v{vL}""")
    if swap: e(f"""v_lshrrev_b32 v{vB}, 1, v{vA}
    v_and_b32 v{vA}, 1, v{vA}
    v_lshl_or_b32 v{vA}, v{vA}, 1, v{vB}""")
    e(f"""v_lshlrev_b32 v{vA}, 3, v{vA}
    v_bfe_u32 v{vB}, v{vL}, 2, 2
    v_lshl_or_b32 v{vKV}, v{vB}, 5, v{vA}
    v_lshl_or_b32 v{vKV}, v{vH}, 10, v{vKV}
    v_add_u32 v{vKV}, 0x10000, v{vKV}
    v_lshl_or_b32 v{vA}, v{vB}, 7, v{vA}
    v_lshl_or_b32 v{vA}, v{vH}, {12 if seg else 10}, v{vA}
    v_bfe_u32 v{vB}, v{vL}, 4, 1
    v_lshl_or_b32 v{vA}, v{vB}, 5, v{vA}
    v_bfe_u32 v{vB}, v{vL}, 3, 1
    v_lshl_or_b32 v{vT0}, v{vB}, 6, v{vA}
    v_xor_b32 v{vT1}, 64, v{vT0}""")
def seg128_addr(e,d,rowlog,swap=False):
    e(f"v_and_b32 v{vB}, 7, v{vL}")
    if swap: e(f"v_and_b32 v{vC}, 4, v{vL}\nv_add_u32 v{vB}, v{vB}, v{vC}")
    e(f"""v_bfe_u32 v{vA}, v{vL}, 3, 2
    v_lshlrev_b32 v{vA}, 5, v{vA}
    v_lshl_or_b32 v{vA}, v{vH}, 4, v{vA}
    v_lshl_or_b32 v{d}, v{vB}, {rowlog}, v{vA}""")
def xpose4(e,ks,T,base=P0):
    R=[base+4*(ks+q) for q in range(4)]
    for a in range(2):
        for i in range(4): e(f"v_mov_b32_dpp v{T[a]+i}, v{R[2*a]+i} row_ror:8 row_mask:0xf bank_mask:0xf")
    for a in range(2):
        for i in range(4): e(f"v_mov_b32_dpp v{R[2*a]+i}, v{R[2*a+1]+i} row_ror:8 row_mask:0xf bank_mask:0xc")
    for a in range(2):
        for i in range(4): e(f"v_mov_b32_dpp v{R[2*a+1]+i}, v{T[a]+i} quad_perm:[0,1,2,3] row_mask:0xf bank_mask:0x3")
    for a in range(2):
        for i in range(4): e(f"v_permlane16_swap_b32 v{R[a]+i}, v{R[a+2]+i}")
def quad_addr(e,d,rowlog,swap=False):
    e(f"v_and_b32 v{vB}, 14, v{vL}")
    if swap: swap23(e,vC,vB,vA); e(f"v_mov_b32 v{vB}, v{vC}")
    e(f"""v_lshrrev_b32 v{vA}, 4, v{vL}
    v_lshlrev_b32 v{vA}, 5, v{vA}
    v_lshl_or_b32 v{d}, v{vB}, {rowlog}, v{vA}
    v_and_b32 v{vA}, 1, v{vL}
    v_lshl_or_b32 v{d}, v{vA}, 4, v{d}""")
def odd_mask(e,m): e(f"v_and_b32 v{m}, 1, v{vL}\nv_sub_u32 v{m}, 0, v{m}")
QP=[0,1,2,3]
def xposeq(e,ks,T,M,base=P0):
    R=[base+4*(ks+q) for q in range(4)]
    dp="quad_perm:[1,0,3,2] row_mask:0xf bank_mask:0xf"
    ai=[(a,i) for a in range(2) for i in range(4)]
    for a,i in ai: e(f"v_xor_b32_dpp v{T[a]+i}, v{R[2*a+1]+i}, v{R[2*a]+i} {dp}")
    for a,i in ai: e(f"v_and_b32 v{T[a]+i}, v{M}, v{T[a]+i}")
    for a,i in ai: e(f"v_xor_b32 v{R[2*a]+i}, v{T[a]+i}, v{R[2*a]+i}")
    for a,i in ai: e(f"v_xor_b32_dpp v{R[2*a+1]+i}, v{T[a]+i}, v{R[2*a+1]+i} {dp}")
    for a,i in ai: e(f"v_permlane16_swap_b32 v{R[a]+i}, v{R[a+2]+i}")
def xlist(*a,**k):
    t=E(); xposeq(t,*a,**k); return t.l
def load_list(e,rowstride,pfrag,kv,sS,sP):
    e(f"s_lshl_b32 s40, s{sW}, 12\ns_mul_i32 s54, s{sW}, {32*rowstride}\ns_add_u32 s54, s54, s{sS}")
    if kv: e(f"s_lshl_b32 s56, s{sW}, 10\ns_add_u32 s43, s56, 0x10000\nv_lshlrev_b32 v{vD}, 4, v{vL}")
    Ld=[]
    for c in range(4):
        hd=(f"s_add_u32 s55, s53, {c}\ns_and_b32 s55, s55, 3\ns_mul_i32 s41, s55, {128*rowstride}\ns_add_u32 s41, s41, s54\n"
            f"s_lshl_b32 s57, s55, {13 if pfrag else 8}\ns_add_u32 s57, s57, s{sP}\n")
        if kv: hd+="s_lshl_b32 s42, s55, 12\ns_add_u32 s42, s42, s56\n"
        for i in range(4):
            Ld.append((hd if i==0 else "")+f"s_mov_b32 m0, s40\ns_add_u32 s40, s40, {1024 if i<3 else 16384-3072}\n"
              f"buffer_load_dwordx4 v{vSO}, {sr(SRD_S,4)}, s41 offen lds"+(f"\ns_add_u32 s41, s41, {8*rowstride}" if i<3 else ""))
        if kv:
            Ld.append(f"s_mov_b32 m0, s43\ns_add_u32 s43, s43, 4096\n"
              f"buffer_load_dwordx4 v{vD}, {sr(SRD_X,4)}, s42 offen lds")
        for k in range(8):
            ks=8*c+k
            if pfrag:
                Ld.append(f"buffer_load_dwordx4 {vr(P0+4*ks,4)}, v{vPO}, {sr(SRD_P,4)}, s57 offen offset:{(ks&3)*1024}"+(f"\ns_add_u32 s57, s57, 4096" if k==3 else ""))
            else:
                Ld.append(("s_add_u32 s58, s57, 16384\n" if k==2 else "")+f"buffer_load_dwordx4 {vr(P0+4*ks,4)}, v{vPO}, {sr(SRD_P,4)}, s{58 if k&2 else 57} offen offset:{(k>>2)*128+(k&1)*1024}")
    return Ld
ROT=int(os.environ.get('ROT','4'))
PRE=int(os.environ.get('PRE','2'))
PRE1=int(os.environ.get('PRE1','2'))
def pre_loads(e,Ld):
    global PRE
    PRE=PRE1 if len(Ld)==52 else 2
    for x in Ld[:PRE*len(Ld)//4]: e(x)
def main_tr(e,p_is_a,Ld,kv,seg,sti=None):
    per=len(Ld)//4; pre=per-8
    D=3 if kv else 4; L=D-1; nr=6 if kv else 4; st=12 if kv else 8
    base=28 if kv else 32
    done=[-1]; iss=[PRE*per]
    def issue(n):
        while iss[0]<min(n,len(Ld)): e(Ld[iss[0]]); iss[0]+=1
    def vwait(pos):
        issue(pos+1)
        if pos>done[0]:
            e(f"s_waitcnt vmcnt({iss[0]-pos-1})"); done[0]=pos
    def reads(ks):
        if ks%8==0:
            vwait(per*(ks//8)+pre-1); e("s_barrier")
            if sti is not None: stamp(e,sti+ks//8,40,3,2,vt=(14,15))
        b=base+st*(ks%D)
        for mt in range(2):
            for u in range(2):
                e(f"ds_read_b64_tr_b16 {vr(b+4*mt+2*u,2)}, v{vT0+mt} offset:{((ks>>2)*8192+(ks&3)*1024 if seg else ks*2048)+u*512}")
        if kv:
            for u in range(2): e(f"ds_read_b64_tr_b16 {vr(b+8+2*u,2)}, v{vKV} offset:{(ks>>2)*2048+(ks&3)*256+u*128}")
    XQ=[]
    for ks in range(L): reads(ks)
    for ks in range(32):
        ahead=min(L-1,31-ks)
        if seg:
            if ks==0: vwait(pre+3); xposeq(e,0,(16,20),24)
            if ks%4==0 and ks<28:
                vwait(per*((ks+4)//8)+pre+(ks+4)%8+3); XQ=xlist(ks+4,(16,20),24)
        else: vwait(per*(ks//8)+pre+ks%8)
        e(f"s_waitcnt lgkmcnt({ahead*nr})")
        b=base+st*(ks%D); p=vr(P0+4*((ks&~3)+QP[ks&3] if seg else ks),4)
        for mt in range(2):
            a=vr(ACC+16*mt,16); c=a if ks else '0'; s=vr(b+4*mt,4)
            e(f"{MF32} {a}, {p if p_is_a else s}, {s if p_is_a else p}, {c}")
            for _ in range((5 if not kv else 4-mt) if XQ else 0): e(XQ.pop(0))
        if kv:
            a=vr(ACC+32,16); c=a if ks else '0'; s=vr(b+8,4)
            e(f"{MF32} {a}, {s if kv=='K' else p}, {p if kv=='K' else s}, {c}")
            for _ in range(3 if XQ else 0): e(XQ.pop(0))
        if ks+L<32: reads(ks+L)
        issue(PRE*per+((ks+1)*per+7)//8)
def store_acc(e,acc,scale,srd_,voff,soff,off,tmp):
    if scale is not None:
        for i in range(16): e(f"v_mul_f32 v{acc+i}, {scale}, v{acc+i}")
    for i in range(8): e(f"v_cvt_pk_bf16_f32 v{tmp+i}, v{acc+2*i}, v{acc+2*i+1}")
    for j in range(2): e(f"buffer_store_dwordx4 {vr(tmp+4*j,4)}, v{voff}, {sr(srd_,4)}, {soff} offen offset:{off+32*j}")
WQ=os.environ.get('WQ','sc0 sc1'); WY=os.environ.get('WY','sc0 sc1'); WO=os.environ.get('WO','sc0 sc1')
PC=int(os.environ.get("PC","3"))
def pc128_addr(e,d,rowlog):
    e(f"""v_and_b32 v{vB}, 14, v{vL}
    v_bfe_u32 v{vA}, v{vL}, 4, 1
    v_lshlrev_b32 v{vA}, 6, v{vA}
    v_lshl_or_b32 v{vA}, v{vH}, 5, v{vA}
    v_lshl_or_b32 v{d}, v{vB}, {rowlog}, v{vA}
    v_and_b32 v{vA}, 1, v{vL}
    v_lshl_or_b32 v{d}, v{vA}, 4, v{d}
    v_sub_u32 v{vC}, 0, v{vA}""")
def st128_addr(e,d,rowlog):
    if PC&1: pc128_addr(e,d,rowlog)
    else: seg128_addr(e,d,rowlog)
def store128(e,scale,srd_,soff,rowlog,wt):
    for i in range(32):
        if scale is not None: e(f"v_mul_f32 v{ACC+i}, {scale}, v{ACC+i}")
    for i in range(16): e(f"v_cvt_pk_bf16_f32 v{32+i}, v{ACC+2*i}, v{ACC+2*i+1}")
    if PC&1:
        e("s_nop 1")
        for a in range(2):
            for i in range(4): e(f"v_permlane32_swap_b32 v{32+8*a+i}, v{36+8*a+i}")
        e("s_nop 1")
        xposeq(e,0,(48,52),vC,32); inc=[1,15,1]
    else:
        xpose4(e,0,(48,52),32); inc=[8,8,8]
    for q in range(4):
        e(f"buffer_store_dwordx4 {vr(32+4*q,4)}, v{vST}, {sr(srd_,4)}, s{soff} offen {wt}")
        if q<3: e(f"s_add_u32 s{soff}, s{soff}, {inc[q]<<rowlog}")
def seg64_st(e,rowlog):
    if PC&2:
        e(f"""v_and_b32 v{vB}, 30, v{vL}
        v_and_b32 v{vA}, 1, v{vL}
        v_sub_u32 v{vC}, 0, v{vA}
        v_lshlrev_b32 v{vA}, 4, v{vA}
        v_lshl_or_b32 v{vA}, v{vH}, 5, v{vA}
        v_lshl_or_b32 v{vST}, v{vB}, {rowlog}, v{vA}"""); return
    e(f"""v_and_b32 v{vB}, 15, v{vL}
    v_bfe_u32 v{vA}, v{vL}, 4, 1
    v_lshlrev_b32 v{vA}, 5, v{vA}
    v_lshl_or_b32 v{vA}, v{vH}, 4, v{vA}
    v_lshl_or_b32 v{vST}, v{vB}, {rowlog}, v{vA}""")
def store64(e,acc,srd_,soff,rowlog,tmp,wt):
    for i in range(8): e(f"v_cvt_pk_bf16_f32 v{tmp+i}, v{acc+2*i}, v{acc+2*i+1}")
    e("s_nop 1")
    if PC&2:
        dp="quad_perm:[1,0,3,2] row_mask:0xf bank_mask:0xf"; T=48
        for i in range(4): e(f"v_permlane32_swap_b32 v{tmp+i}, v{tmp+4+i}")
        e("s_nop 1")
        for i in range(4): e(f"v_xor_b32_dpp v{T+i}, v{tmp+4+i}, v{tmp+i} {dp}")
        for i in range(4): e(f"v_and_b32 v{T+i}, v{vC}, v{T+i}")
        for i in range(4): e(f"v_xor_b32 v{tmp+i}, v{T+i}, v{tmp+i}")
        for i in range(4): e(f"v_xor_b32_dpp v{tmp+4+i}, v{T+i}, v{tmp+4+i} {dp}")
    else:
        for i in range(4): e(f"v_permlane16_swap_b32 v{tmp+i}, v{tmp+4+i}")
    e(f"""buffer_store_dwordx4 {vr(tmp,4)}, v{vST}, {sr(srd_,4)}, s{soff} offen {wt}
    s_add_u32 s{soff}, s{soff}, {(1 if PC&2 else 16)<<rowlog}
    buffer_store_dwordx4 {vr(tmp+4,4)}, v{vST}, {sr(srd_,4)}, s{soff} offen {wt}""")
def proj(e,pre,is_q):
    s_dma_voff(e,10); tr_addrs(e,True,is_q)
    if is_q: quad_addr(e,vPO,10); odd_mask(e,24)
    else: e(f"v_lshlrev_b32 v{vPO}, 4, v{vL}")
    e(f"""s_lshl_b32 s6, s4, 2
    s_add_u32 s6, s6, s{sW}
    s_lshl_b32 s44, s6, 15
    s_lshl_b32 s45, s5, 7
    s_add_u32 s53, s4, s5
    s_and_b32 s53, s53, {3 if (ROT&(1 if is_q else 4)) else 0}""")
    stamp_init(e)
    Ld=load_list(e,1024,not is_q,is_q,45,44); pre_loads(e,Ld)
    stamp(e,0 if is_q else 20,40,3,2,vt=(14,15))
    if is_q:
        e(f"""s_and_b32 s7, s5, 3
        s_cmp_eq_u32 s7, s{sW}
        s_cbranch_scc0 {pre}_plain
        s_cmp_lt_u32 s5, 4
        s_cbranch_scc0 {pre}_v""")
        main_tr(e,False,Ld,'K',True)
        e("s_nop 7\ns_nop 7")
        for i in range(4): e(f"v_cvt_pk_bf16_f32 v{16+i}, v{ACC+32+2*i}, v{ACC+33+2*i}")
        e(f"""v_lshlrev_b32 v{vA}, 4, v{vL}
        s_lshl_b32 s46, s6, 10
        buffer_store_dwordx4 v[16:19], v{vA}, {sr(SRD_Y,4)}, s46 offen
        s_branch {pre}_epi
        {pre}_v:""")
        main_tr(e,False,Ld,'V',True)
        e("s_nop 7\ns_nop 7")
        for i in range(8): e(f"v_cvt_pk_bf16_f32 v{16+i}, v{ACC+32+2*i}, v{ACC+33+2*i}")
        e(f"""v_lshlrev_b32 v{vA}, 4, v{vN}
        v_lshl_or_b32 v{vA}, v{vH}, 8, v{vA}
        v_cmp_gt_u32 vcc, 16, v{vN}
        s_lshl_b32 s46, s6, 10
        s_add_u32 s46, s46, 0x10000
        s_and_saveexec_b64 s[48:49], vcc
        buffer_store_dwordx4 v[16:19], v{vA}, {sr(SRD_Y,4)}, s46 offen
        buffer_store_dwordx4 v[20:23], v{vA}, {sr(SRD_Y,4)}, s46 offen offset:512
        s_mov_b64 exec, s[48:49]
        s_branch {pre}_epi
        {pre}_plain:""")
    main_tr(e,False,Ld,None,is_q,1 if is_q else 21)
    e(f"{pre}_epi:")
    if is_q: e(f"s_add_u32 s44, s44, s45\ns_mov_b32 s47, {fhex(0.25*1.4426950408889634)}")
    else: e("s_lshl_b32 s44, s44, 1\ns_add_u32 s44, s44, s45")
    st128_addr(e,vST,10 if is_q else 11)
    e("s_nop 7")
    stamp(e,5 if is_q else 25,40,3,2,vt=(14,15))
    store128(e,'s47' if is_q else None,SRD_O,44,10 if is_q else 11,WQ if is_q else WO)
    if STAMP: e("s_waitcnt vmcnt(0)")
    stamp(e,6 if is_q else 26,40,3,2,vt=(14,15)); stamp(e,7 if is_q else 27,40,3,2,True,vt=(14,15))
    wg_end(e,0 if is_q else 2)
    e("s_endpgm")
```

```python
import os
from gen_common import *
P0=128; ACC=64; SF=32
vL=1; vH=2; vN=3; vPO=4; vSO=5; vT0=6; vT1=7; vKV=8; vST=9; vA=10; vB=11; vC=12; vD=13
sW=3
SRD_P=8; SRD_S=12; SRD_O=16; SRD_X=20; SRD_Y=24
def prolog_ids(e):
    e(f"""v_lshrrev_b32 v{vA}, 6, v0
    v_and_b32 v{vL}, 63, v0
    v_readfirstlane_b32 s{sW}, v{vA}
    v_lshrrev_b32 v{vH}, 5, v{vL}
    v_and_b32 v{vN}, 31, v{vL}""")
def s_dma_voff(e,rowstride_log2):
    e(f"""v_lshrrev_b32 v{vA}, 2, v{vL}
    v_and_b32 v{vA}, 4, v{vA}
    v_xor_b32 v{vA}, v{vA}, v{vL}
    v_and_b32 v{vA}, 7, v{vA}
    v_lshlrev_b32 v{vA}, 4, v{vA}
    v_lshrrev_b32 v{vB}, 3, v{vL}
    v_lshl_or_b32 v{vSO}, v{vB}, {rowstride_log2}, v{vA}""")
def tr_addrs(e,swap,seg=False):
    e(f"""v_and_b32 v{vA}, 3, v{vL}""")
    if swap: e(f"""v_lshrrev_b32 v{vB}, 1, v{vA}
    v_and_b32 v{vA}, 1, v{vA}
    v_lshl_or_b32 v{vA}, v{vA}, 1, v{vB}""")
    e(f"""v_lshlrev_b32 v{vA}, 3, v{vA}
    v_bfe_u32 v{vB}, v{vL}, 2, 2
    v_lshl_or_b32 v{vKV}, v{vB}, 5, v{vA}
    v_lshl_or_b32 v{vKV}, v{vH}, 10, v{vKV}
    v_add_u32 v{vKV}, 0x10000, v{vKV}
    v_lshl_or_b32 v{vA}, v{vB}, 7, v{vA}
    v_lshl_or_b32 v{vA}, v{vH}, {12 if seg else 10}, v{vA}
    v_bfe_u32 v{vB}, v{vL}, 4, 1
    v_lshl_or_b32 v{vA}, v{vB}, 5, v{vA}
    v_bfe_u32 v{vB}, v{vL}, 3, 1
    v_lshl_or_b32 v{vT0}, v{vB}, 6, v{vA}
    v_xor_b32 v{vT1}, 64, v{vT0}""")
def seg128_addr(e,d,rowlog,swap=False):
    e(f"v_and_b32 v{vB}, 7, v{vL}")
    if swap: e(f"v_and_b32 v{vC}, 4, v{vL}\nv_add_u32 v{vB}, v{vB}, v{vC}")
    e(f"""v_bfe_u32 v{vA}, v{vL}, 3, 2
    v_lshlrev_b32 v{vA}, 5, v{vA}
    v_lshl_or_b32 v{vA}, v{vH}, 4, v{vA}
    v_lshl_or_b32 v{d}, v{vB}, {rowlog}, v{vA}""")
def xpose4(e,ks,T,base=P0):
    R=[base+4*(ks+q) for q in range(4)]
    for a in range(2):
        for i in range(4): e(f"v_mov_b32_dpp v{T[a]+i}, v{R[2*a]+i} row_ror:8 row_mask:0xf bank_mask:0xf")
    for a in range(2):
        for i in range(4): e(f"v_mov_b32_dpp v{R[2*a]+i}, v{R[2*a+1]+i} row_ror:8 row_mask:0xf bank_mask:0xc")
    for a in range(2):
        for i in range(4): e(f"v_mov_b32_dpp v{R[2*a+1]+i}, v{T[a]+i} quad_perm:[0,1,2,3] row_mask:0xf bank_mask:0x3")
    for a in range(2):
        for i in range(4): e(f"v_permlane16_swap_b32 v{R[a]+i}, v{R[a+2]+i}")
def quad_addr(e,d,rowlog,swap=False):
    e(f"v_and_b32 v{vB}, 14, v{vL}")
    if swap: swap23(e,vC,vB,vA); e(f"v_mov_b32 v{vB}, v{vC}")
    e(f"""v_lshrrev_b32 v{vA}, 4, v{vL}
    v_lshlrev_b32 v{vA}, 5, v{vA}
    v_lshl_or_b32 v{d}, v{vB}, {rowlog}, v{vA}
    v_and_b32 v{vA}, 1, v{vL}
    v_lshl_or_b32 v{d}, v{vA}, 4, v{d}""")
def odd_mask(e,m): e(f"v_and_b32 v{m}, 1, v{vL}\nv_sub_u32 v{m}, 0, v{m}")
QP=[0,1,2,3]
def xposeq(e,ks,T,M,base=P0):
    R=[base+4*(ks+q) for q in range(4)]
    dp="quad_perm:[1,0,3,2] row_mask:0xf bank_mask:0xf"
    ai=[(a,i) for a in range(2) for i in range(4)]
    for a,i in ai: e(f"v_xor_b32_dpp v{T[a]+i}, v{R[2*a+1]+i}, v{R[2*a]+i} {dp}")
    for a,i in ai: e(f"v_and_b32 v{T[a]+i}, v{M}, v{T[a]+i}")
    for a,i in ai: e(f"v_xor_b32 v{R[2*a]+i}, v{T[a]+i}, v{R[2*a]+i}")
    for a,i in ai: e(f"v_xor_b32_dpp v{R[2*a+1]+i}, v{T[a]+i}, v{R[2*a+1]+i} {dp}")
    for a,i in ai: e(f"v_permlane16_swap_b32 v{R[a]+i}, v{R[a+2]+i}")
def xlist(*a,**k):
    t=E(); xposeq(t,*a,**k); return t.l
def load_list(e,rowstride,pfrag,kv,sS,sP):
    e(f"s_lshl_b32 s40, s{sW}, 12\ns_mul_i32 s54, s{sW}, {32*rowstride}\ns_add_u32 s54, s54, s{sS}")
    if kv: e(f"s_lshl_b32 s56, s{sW}, 10\ns_add_u32 s43, s56, 0x10000\nv_lshlrev_b32 v{vD}, 4, v{vL}")
    Ld=[]
    for c in range(4):
        hd=(f"s_add_u32 s55, s53, {c}\ns_and_b32 s55, s55, 3\ns_mul_i32 s41, s55, {128*rowstride}\ns_add_u32 s41, s41, s54\n"
            f"s_lshl_b32 s57, s55, {13 if pfrag else 8}\ns_add_u32 s57, s57, s{sP}\n")
        if kv: hd+="s_lshl_b32 s42, s55, 12\ns_add_u32 s42, s42, s56\n"
        for i in range(4):
            Ld.append((hd if i==0 else "")+f"s_mov_b32 m0, s40\ns_add_u32 s40, s40, {1024 if i<3 else 16384-3072}\n"
              f"buffer_load_dwordx4 v{vSO}, {sr(SRD_S,4)}, s41 offen lds"+(f"\ns_add_u32 s41, s41, {8*rowstride}" if i<3 else ""))
        if kv:
            Ld.append(f"s_mov_b32 m0, s43\ns_add_u32 s43, s43, 4096\n"
              f"buffer_load_dwordx4 v{vD}, {sr(SRD_X,4)}, s42 offen lds")
        for k in range(8):
            ks=8*c+k
            if pfrag:
                Ld.append(f"buffer_load_dwordx4 {vr(P0+4*ks,4)}, v{vPO}, {sr(SRD_P,4)}, s57 offen offset:{(ks&3)*1024}"+(f"\ns_add_u32 s57, s57, 4096" if k==3 else ""))
            else:
                Ld.append(("s_add_u32 s58, s57, 16384\n" if k==2 else "")+f"buffer_load_dwordx4 {vr(P0+4*ks,4)}, v{vPO}, {sr(SRD_P,4)}, s{58 if k&2 else 57} offen offset:{(k>>2)*128+(k&1)*1024}")
    return Ld
ROT=int(os.environ.get('ROT','4'))
PRE=int(os.environ.get('PRE','2'))
PRE1=int(os.environ.get('PRE1','2'))
def pre_loads(e,Ld):
    global PRE
    PRE=PRE1 if len(Ld)==52 else 2
    for x in Ld[:PRE*len(Ld)//4]: e(x)
def main_tr(e,p_is_a,Ld,kv,seg,sti=None):
    per=len(Ld)//4; pre=per-8
    D=3 if kv else 4; L=D-1; nr=6 if kv else 4; st=12 if kv else 8
    base=28 if kv else 32
    done=[-1]; iss=[PRE*per]
    def issue(n):
        while iss[0]<min(n,len(Ld)): e(Ld[iss[0]]); iss[0]+=1
    def vwait(pos):
        issue(pos+1)
        if pos>done[0]:
            e(f"s_waitcnt vmcnt({iss[0]-pos-1})"); done[0]=pos
    def reads(ks):
        if ks%8==0:
            vwait(per*(ks//8)+pre-1); e("s_barrier")
            if sti is not None: stamp(e,sti+ks//8,40,3,2,vt=(14,15))
        b=base+st*(ks%D)
        for mt in range(2):
            for u in range(2):
                e(f"ds_read_b64_tr_b16 {vr(b+4*mt+2*u,2)}, v{vT0+mt} offset:{((ks>>2)*8192+(ks&3)*1024 if seg else ks*2048)+u*512}")
        if kv:
            for u in range(2): e(f"ds_read_b64_tr_b16 {vr(b+8+2*u,2)}, v{vKV} offset:{(ks>>2)*2048+(ks&3)*256+u*128}")
    XQ=[]
    for ks in range(L): reads(ks)
    for ks in range(32):
        ahead=min(L-1,31-ks)
        if seg:
            if ks==0: vwait(pre+3); xposeq(e,0,(16,20),24)
            if ks%4==0 and ks<28:
                vwait(per*((ks+4)//8)+pre+(ks+4)%8+3); XQ=xlist(ks+4,(16,20),24)
        else: vwait(per*(ks//8)+pre+ks%8)
        e(f"s_waitcnt lgkmcnt({ahead*nr})")
        b=base+st*(ks%D); p=vr(P0+4*((ks&~3)+QP[ks&3] if seg else ks),4)
        for mt in range(2):
            a=vr(ACC+16*mt,16); c=a if ks else '0'; s=vr(b+4*mt,4)
            e(f"{MF32} {a}, {p if p_is_a else s}, {s if p_is_a else p}, {c}")
            for _ in range((5 if not kv else 4-mt) if XQ else 0): e(XQ.pop(0))
        if kv:
            a=vr(ACC+32,16); c=a if ks else '0'; s=vr(b+8,4)
            e(f"{MF32} {a}, {s if kv=='K' else p}, {p if kv=='K' else s}, {c}")
            for _ in range(3 if XQ else 0): e(XQ.pop(0))
        if ks+L<32: reads(ks+L)
        issue(PRE*per+((ks+1)*per+7)//8)
def store_acc(e,acc,scale,srd_,voff,soff,off,tmp):
    if scale is not None:
        for i in range(16): e(f"v_mul_f32 v{acc+i}, {scale}, v{acc+i}")
    for i in range(8): e(f"v_cvt_pk_bf16_f32 v{tmp+i}, v{acc+2*i}, v{acc+2*i+1}")
    for j in range(2): e(f"buffer_store_dwordx4 {vr(tmp+4*j,4)}, v{voff}, {sr(srd_,4)}, {soff} offen offset:{off+32*j}")
WQ=os.environ.get('WQ','sc0 sc1'); WY=os.environ.get('WY','sc0 sc1'); WO=os.environ.get('WO','sc0 sc1')
PC=int(os.environ.get("PC","5"))
def pc128_addr(e,d,rowlog):
    e(f"""v_and_b32 v{vB}, 14, v{vL}
    v_bfe_u32 v{vA}, v{vL}, 4, 1
    v_lshlrev_b32 v{vA}, 6, v{vA}
    v_lshl_or_b32 v{vA}, v{vH}, 5, v{vA}
    v_lshl_or_b32 v{d}, v{vB}, {rowlog}, v{vA}
    v_and_b32 v{vA}, 1, v{vL}
    v_lshl_or_b32 v{d}, v{vA}, 4, v{d}
    v_sub_u32 v{vC}, 0, v{vA}""")
def xch(e,pairs,T,M,qp):
    dp=f"quad_perm:{qp} row_mask:0xf bank_mask:0xf"
    ai=[(a,i) for a in range(len(pairs)) for i in range(4)]
    for a,i in ai: e(f"v_xor_b32_dpp v{T+4*a+i}, v{pairs[a][1]+i}, v{pairs[a][0]+i} {dp}")
    for a,i in ai: e(f"v_and_b32 v{T+4*a+i}, v{M}, v{T+4*a+i}")
    for a,i in ai: e(f"v_xor_b32 v{pairs[a][0]+i}, v{T+4*a+i}, v{pairs[a][0]+i}")
    for a,i in ai: e(f"v_xor_b32_dpp v{pairs[a][1]+i}, v{T+4*a+i}, v{pairs[a][1]+i} {dp}")
def q_addr(e,d,rowlog,wide):
    e(f"""v_and_b32 v{vB}, {12 if wide else 28}, v{vL}
    v_lshl_or_b32 v{vB}, v{vH}, 1, v{vB}
    v_and_b32 v{vA}, 3, v{vL}
    v_lshlrev_b32 v{vA}, 4, v{vA}
    v_lshl_or_b32 v{d}, v{vB}, {rowlog}, v{vA}""")
    if wide: e(f"v_bfe_u32 v{vA}, v{vL}, 4, 1\nv_lshl_or_b32 v{d}, v{vA}, 6, v{d}")
    e(f"v_bfe_i32 v{vC}, v{vL}, 0, 1\nv_bfe_i32 v{vD}, v{vL}, 1, 1")
def st128_addr(e,d,rowlog):
    if PC&8: return q_addr(e,d,rowlog,True)
    if PC&1: pc128_addr(e,d,rowlog)
    else: seg128_addr(e,d,rowlog)
def store128(e,scale,srd_,soff,rowlog,wt):
    for i in range(32):
        if scale is not None: e(f"v_mul_f32 v{ACC+i}, {scale}, v{ACC+i}")
    for i in range(16): e(f"v_cvt_pk_bf16_f32 v{32+i}, v{ACC+2*i}, v{ACC+2*i+1}")
    if PC&9:
        e("s_nop 1")
        if PC&8: xch(e,[(32,36),(40,44)],48,vD,"[2,3,0,1]"); e("s_nop 1")
        for a in range(2):
            for i in range(4): e(f"v_permlane32_swap_b32 v{32+8*a+i}, v{36+8*a+i}")
        e("s_nop 1")
        xposeq(e,0,(48,52),vC,32); inc=[1,15,1]
    else:
        xpose4(e,0,(48,52),32); inc=[8,8,8]
    for q in range(4):
        e(f"buffer_store_dwordx4 {vr(32+4*q,4)}, v{vST}, {sr(srd_,4)}, s{soff} offen {wt}")
        if q<3: e(f"s_add_u32 s{soff}, s{soff}, {inc[q]<<rowlog}")
def seg64_st(e,rowlog):
    if PC&4: return q_addr(e,vST,rowlog,False)
    if PC&2:
        e(f"""v_and_b32 v{vB}, 30, v{vL}
        v_and_b32 v{vA}, 1, v{vL}
        v_sub_u32 v{vC}, 0, v{vA}
        v_lshlrev_b32 v{vA}, 4, v{vA}
        v_lshl_or_b32 v{vA}, v{vH}, 5, v{vA}
        v_lshl_or_b32 v{vST}, v{vB}, {rowlog}, v{vA}"""); return
    e(f"""v_and_b32 v{vB}, 15, v{vL}
    v_bfe_u32 v{vA}, v{vL}, 4, 1
    v_lshlrev_b32 v{vA}, 5, v{vA}
    v_lshl_or_b32 v{vA}, v{vH}, 4, v{vA}
    v_lshl_or_b32 v{vST}, v{vB}, {rowlog}, v{vA}""")
def store64(e,acc,srd_,soff,rowlog,tmp,wt):
    for i in range(8): e(f"v_cvt_pk_bf16_f32 v{tmp+i}, v{acc+2*i}, v{acc+2*i+1}")
    e("s_nop 1")
    if PC&6:
        dp="quad_perm:[1,0,3,2] row_mask:0xf bank_mask:0xf"; T=48
        if PC&4: xch(e,[(tmp,tmp+4)],48,vD,"[2,3,0,1]"); e("s_nop 1")
        for i in range(4): e(f"v_permlane32_swap_b32 v{tmp+i}, v{tmp+4+i}")
        e("s_nop 1")
        for i in range(4): e(f"v_xor_b32_dpp v{T+i}, v{tmp+4+i}, v{tmp+i} {dp}")
        for i in range(4): e(f"v_and_b32 v{T+i}, v{vC}, v{T+i}")
        for i in range(4): e(f"v_xor_b32 v{tmp+i}, v{T+i}, v{tmp+i}")
        for i in range(4): e(f"v_xor_b32_dpp v{tmp+4+i}, v{T+i}, v{tmp+4+i} {dp}")
    else:
        for i in range(4): e(f"v_permlane16_swap_b32 v{tmp+i}, v{tmp+4+i}")
    e(f"""buffer_store_dwordx4 {vr(tmp,4)}, v{vST}, {sr(srd_,4)}, s{soff} offen {wt}
    s_add_u32 s{soff}, s{soff}, {(1 if PC&6 else 16)<<rowlog}
    buffer_store_dwordx4 {vr(tmp+4,4)}, v{vST}, {sr(srd_,4)}, s{soff} offen {wt}""")
def proj(e,pre,is_q):
    s_dma_voff(e,10); tr_addrs(e,True,is_q)
    if is_q: quad_addr(e,vPO,10); odd_mask(e,24)
    else: e(f"v_lshlrev_b32 v{vPO}, 4, v{vL}")
    e(f"""s_lshl_b32 s6, s4, 2
    s_add_u32 s6, s6, s{sW}
    s_lshl_b32 s44, s6, 15
    s_lshl_b32 s45, s5, 7
    s_add_u32 s53, s4, s5
    s_and_b32 s53, s53, {3 if (ROT&(1 if is_q else 4)) else 0}""")
    stamp_init(e)
    Ld=load_list(e,1024,not is_q,is_q,45,44); pre_loads(e,Ld)
    stamp(e,0 if is_q else 20,40,3,2,vt=(14,15))
    if is_q:
        e(f"""s_and_b32 s7, s5, 3
        s_cmp_eq_u32 s7, s{sW}
        s_cbranch_scc0 {pre}_plain
        s_cmp_lt_u32 s5, 4
        s_cbranch_scc0 {pre}_v""")
        main_tr(e,False,Ld,'K',True)
        e("s_nop 7\ns_nop 7")
        for i in range(4): e(f"v_cvt_pk_bf16_f32 v{16+i}, v{ACC+32+2*i}, v{ACC+33+2*i}")
        e(f"""v_lshlrev_b32 v{vA}, 4, v{vL}
        s_lshl_b32 s46, s6, 10
        buffer_store_dwordx4 v[16:19], v{vA}, {sr(SRD_Y,4)}, s46 offen
        s_branch {pre}_epi
        {pre}_v:""")
        main_tr(e,False,Ld,'V',True)
        e("s_nop 7\ns_nop 7")
        for i in range(8): e(f"v_cvt_pk_bf16_f32 v{16+i}, v{ACC+32+2*i}, v{ACC+33+2*i}")
        e(f"""v_lshlrev_b32 v{vA}, 4, v{vN}
        v_lshl_or_b32 v{vA}, v{vH}, 8, v{vA}
        v_cmp_gt_u32 vcc, 16, v{vN}
        s_lshl_b32 s46, s6, 10
        s_add_u32 s46, s46, 0x10000
        s_and_saveexec_b64 s[48:49], vcc
        buffer_store_dwordx4 v[16:19], v{vA}, {sr(SRD_Y,4)}, s46 offen
        buffer_store_dwordx4 v[20:23], v{vA}, {sr(SRD_Y,4)}, s46 offen offset:512
        s_mov_b64 exec, s[48:49]
        s_branch {pre}_epi
        {pre}_plain:""")
    main_tr(e,False,Ld,None,is_q,1 if is_q else 21)
    e(f"{pre}_epi:")
    if is_q: e(f"s_add_u32 s44, s44, s45\ns_mov_b32 s47, {fhex(0.25*1.4426950408889634)}")
    else: e("s_lshl_b32 s44, s44, 1\ns_add_u32 s44, s44, s45")
    st128_addr(e,vST,10 if is_q else 11)
    e("s_nop 7")
    stamp(e,5 if is_q else 25,40,3,2,vt=(14,15))
    store128(e,'s47' if is_q else None,SRD_O,44,10 if is_q else 11,WQ if is_q else WO)
    if STAMP: e("s_waitcnt vmcnt(0)")
    stamp(e,6 if is_q else 26,40,3,2,vt=(14,15)); stamp(e,7 if is_q else 27,40,3,2,True,vt=(14,15))
    wg_end(e,0 if is_q else 2)
    e("s_endpgm")
```

```python
from gen_common import *
L_V=65536; L_ONE=131072; L_E1=135168; L_E2=145408; L_END=154624
WT=os.environ.get('WT','sc0 sc1')
WT2=os.environ.get('WT2','sc0 sc1')
def attn(e):
    Q=4; VA=8; KA=9; VS=10; S=[16,32]; O=48; P=64; KB=[72,76]; VB=[80,88]
    SQ=8; SK=12; SO=16
    srd(e,SQ,78,WS_Q,2*MB); srd(e,SK,78,WS_KF,131072); srd(e,SO,78,WS_O,2*MB)
    e(f"""v_lshlrev_b32 v11, 4, v2
    v_lshl_or_b32 v11, v3, 5, v11
    s_lshl_b32 s6, s2, 3
    s_add_u32 s6, s6, s3
    s_lshl_b32 s6, s6, 10
    buffer_load_dwordx4 {vr(Q,4)}, v11, {sr(SQ,4)}, s6 offen
    v_lshlrev_b32 v{KA}, 4, v1
    s_lshl_b32 s40, s3, 10""")
    def chunk():
        e(f"""s_mov_b32 m0, s40
        s_add_u32 s41, s40, 0x10000
        buffer_load_dwordx4 v{KA}, {sr(SK,4)}, s40 offen lds
        s_mov_b32 m0, s41
        s_add_u32 s40, s40, 8192
        buffer_load_dwordx4 v{KA}, {sr(SK,4)}, s41 offen lds""")
    for c in range(3): chunk()
    e(f"""v_mov_b32 v12, 0x3f803f80
    v_mov_b32 v13, 0x3f803f80
    s_lshl_b32 s7, s3, 9
    s_add_u32 s7, s7, {L_ONE}
    v_lshl_add_u32 v14, v1, 3, s7
    ds_write_b64 v14, v[12:13]
    v_lshlrev_b32 v14, 4, v3
    v_lshl_or_b32 v14, v2, 8, v14
    v_add_u32 v14, {L_V}, v14
    v_cmp_gt_u32 vcc, 16, v3
    v_mov_b32 v15, {L_ONE}
    v_mov_b32 v12, 0x1000
    v_cndmask_b32 v{VA}, v15, v14, vcc
    v_cndmask_b32 v{VS}, 0, v12, vcc
    s_waitcnt vmcnt(4) lgkmcnt(0)
    s_barrier""")
    def rdK(t): e(f"ds_read_b128 {vr(KB[t&1],4)}, v{KA} offset:{t*1024}")
    def rdV(t):
        if t and t%4==0: e(f"v_add_u32 v{VA}, v{VA}, v{VS}")
        for s in range(2): e(f"ds_read_b128 {vr(VB[t&1]+4*s,4)}, v{VA} offset:{(t&3)*1024+s*512}")
    def qk(t): e(f"{MF32} {vr(S[t&1],16)}, {vr(KB[t&1],4)}, {vr(Q,4)}, 0")
    def pv(t,s): e(f"{MF32} {vr(O,16)}, {vr(VB[t&1]+4*s,4)}, {vr(P+4*s,4)}, {vr(O,16) if (t or s) else 0}")
    stamp(e,8,100,3,0)
    rdK(0); rdK(1); rdV(0)
    e("s_waitcnt lgkmcnt(3)"); qk(0); e("s_nop 7\ns_nop 3")
    for t in range(64):
        s=S[t&1]
        ex=lambda i: e(f"v_exp_f32 v{s+i}, v{s+i}")
        cv=lambda i: e(f"v_cvt_pk_bf16_f32 v{P+i}, v{s+2*i}, v{s+2*i+1}")
        if (t+2)%8==0 and t+2<64:
            c=(t+2)//8
            e(f"s_waitcnt vmcnt({2 if c<7 else 0}) lgkmcnt(0)\ns_barrier")
            if c+2<8: chunk()
        else: e("s_waitcnt lgkmcnt(0)")
        if t%8==7: stamp(e,9+t//8,100,3,0)
        if t+1<64: qk(t+1)
        if t+2<64: rdK(t+2)
        for i in range(4): ex(i)
        if t: pv(t-1,1)
        if t+1<64: rdV(t+1)
        cv(0);ex(4);ex(5);cv(1);ex(6);ex(7);cv(2);ex(8);cv(3);ex(9);ex(10)
        pv(t,0)
        ex(11);cv(4);ex(12);ex(13);cv(5);ex(14);ex(15);cv(6);cv(7)
    e("s_nop 1"); pv(63,1)
    e(f"""s_mov_b32 s42, {fhex(2.0**-40)}
    s_mov_b32 s43, {fhex(2.0**40)}
    s_nop 7
    s_nop 3
    v_cmp_le_f32 vcc, s42, v{O+8}
    v_cmp_ge_f32 s[44:45], s43, v{O+8}
    s_and_b64 vcc, vcc, s[44:45]
    s_cmp_eq_u64 vcc, -1
    s_cbranch_scc0 K2_fb
    K2_fin:
    v_rcp_f32 v12, v{O+8}
    s_nop 0""")
    for i in range(8): e(f"v_mul_f32 v{O+i}, v12, v{O+i}")
    for i in range(4): e(f"v_cvt_pk_bf16_f32 v{P+i}, v{O+2*i}, v{O+2*i+1}")
    e(f"""v_and_b32 v12, 7, v1
    v_xor_b32 v13, s3, v12
    v_lshlrev_b32 v13, 4, v13
    v_lshl_or_b32 v13, v1, 7, v13
    v_add_u32 v13, {L_E1}, v13
    ds_write_b128 v13, {vr(P,4)}
    v_lshrrev_b32 v14, 3, v1
    v_xor_b32 v13, v14, v12
    v_lshlrev_b32 v13, 4, v13
    v_lshl_or_b32 v13, v14, 7, v13
    s_lshl_b32 s7, s3, 10
    s_add_u32 s7, s7, {L_E1}
    v_add_u32 v13, s7, v13
    v_lshlrev_b32 v12, 4, v12
    v_lshl_or_b32 v12, v14, 10, v12
    s_lshr_b32 s6, s2, 2
    s_lshl_b32 s6, s6, 15
    s_and_b32 s7, s2, 3
    s_lshl_b32 s7, s7, 7
    s_add_u32 s6, s6, s7
    s_and_b32 s7, s3, 3
    s_lshl_b32 s7, s7, 13
    s_add_u32 s6, s6, s7
    s_lshr_b32 s7, s3, 2
    s_lshl_b32 s7, s7, 9
    s_add_u32 s6, s6, s7
    s_waitcnt lgkmcnt(0)
    s_barrier
    ds_read_b128 {vr(P,4)}, v13
    s_waitcnt lgkmcnt(0)
    buffer_store_dwordx4 {vr(P,4)}, v12, {sr(SO,4)}, s6 offen {WT2}""")
    stamp(e,17,100,3,0); stamp(e,18,100,3,0,True); wg_end(e,1); e("s_endpgm")
    e(f"""K2_fb:
    v_mov_b32 v12, 0xff800000
    v_mov_b32 v13, v{KA}
    s_mov_b32 s46, 64
    K2_fb1:
    ds_read_b128 {vr(KB[0],4)}, v13
    v_add_u32 v13, 0x400, v13
    s_waitcnt lgkmcnt(0)
    {MF32} {vr(S[0],16)}, {vr(KB[0],4)}, {vr(Q,4)}, 0
    s_nop 7
    s_nop 7""")
    for i in range(8): e(f"v_max3_f32 v12, v12, v{S[0]+2*i}, v{S[0]+2*i+1}")
    e(f"""s_sub_u32 s46, s46, 1
    s_cmp_lg_u32 s46, 0
    s_cbranch_scc1 K2_fb1
    v_xor_b32 v13, 32, v1
    v_lshlrev_b32 v13, 2, v13
    ds_bpermute_b32 v13, v13, v12
    s_waitcnt lgkmcnt(0)
    v_max_f32 v12, v12, v13""")
    for i in range(16): e(f"v_sub_f32 v{S[1]+i}, 0, v12\nv_mov_b32 v{O+i}, 0")
    e(f"""v_mov_b32 v13, v{KA}
    v_cndmask_b32 v{VA}, v15, v14, s[48:49]
    v_lshrrev_b32 v{VS}, 2, v{VS}
    s_mov_b32 s46, 64
    K2_fb2:
    ds_read_b128 {vr(KB[0],4)}, v13
    ds_read_b128 {vr(VB[0],4)}, v{VA}
    ds_read_b128 {vr(VB[0]+4,4)}, v{VA} offset:512
    v_add_u32 v13, 0x400, v13
    v_add_u32 v{VA}, v{VA}, v{VS}
    s_waitcnt lgkmcnt(0)
    {MF32} {vr(S[0],16)}, {vr(KB[0],4)}, {vr(Q,4)}, {vr(S[1],16)}
    s_nop 7
    s_nop 7""")
    for i in range(16): e(f"v_exp_f32 v{S[0]+i}, v{S[0]+i}")
    e("s_nop 0")
    for i in range(8): e(f"v_cvt_pk_bf16_f32 v{P+i}, v{S[0]+2*i}, v{S[0]+2*i+1}")
    e("s_nop 1")
    for s in range(2): e(f"{MF32} {vr(O,16)}, {vr(VB[0]+4*s,4)}, {vr(P+4*s,4)}, {vr(O,16)}")
    e(f"""s_sub_u32 s46, s46, 1
    s_cmp_lg_u32 s46, 0
    s_cbranch_scc1 K2_fb2
    s_nop 7
    s_nop 7
    s_branch K2_fin""")
def fft(e):
    D64=16; D32=64; TW1=88; TW2=104; X=120; A=136; T=152
    R=4; G=5; vX=6; vE1w=7; vE1r=8; vE2w=9; vE2r=10; vW=11; vZ=12
    SY=8; SYI=12; SZ=16; SZI=20; ST=24; SWR=28; SWI=32; SG=36
    C64=lambda t,ks,k: vr(D64+12*(2*t+ks)+4*k,4)
    C32=lambda t,k: vr(D32+12*t+4*k,4)
    srd(e,SY,78,WS_YT,2*MB); srd(e,SYI,78,WS_YT,2*MB); srd(e,SZ,78,WS_ZT,2*MB); srd(e,SZI,78,WS_ZT,2*MB)
    srd(e,ST,78,WS_TB,4*26*1024); srd(e,SWR,78,WS_WT,257*8192); srd(e,SG,78,WS_G,512*1024)
    e(f"""s_sub_u32 s3, s3, 8
    s_and_b32 s4, s3, 1
    s_lshr_b32 s5, s3, 1
    s_and_b32 s6, s2, 7
    s_lshl_b32 s6, s6, 5
    s_lshr_b32 s7, s2, 3
    s_add_u32 s6, s6, s7
    s_lshl_b32 s40, s6, 13
    s_add_u32 s41, s40, 4096
    s_lshl_b32 s42, s6, 13
    s_lshl_b32 s7, s3, 11
    s_add_u32 s42, s42, s7
    s_cmp_eq_u32 s6, 0
    s_cselect_b32 s{SYI+2}, 0, s{SYI+2}
    s_cselect_b32 s{SZI+2}, 0, s{SZI+2}
    s_cselect_b32 s47, 1, 0
    v_and_b32 v{R}, 15, v1
    v_lshrrev_b32 v{G}, 4, v1
    s_lshl_b32 s7, s4, 11
    v_lshlrev_b32 v13, 4, v{G}
    v_lshl_add_u32 v{vX}, v{R}, 7, v13
    v_add_u32 v{vX}, s7, v{vX}""")
    def ldx():
        for p in range(2):
            for ks in range(2): e(f"buffer_load_dwordx4 {vr(X+8*p+4*ks,4)}, v{vX}, {sr(SYI if p else SY,4)}, s{40+p} offen offset:{64*ks}")
    WB=X+8
    def ldw():
        for t in range(2): e(f"buffer_load_dwordx4 {vr(WB+4*t,4)}, v14, {sr(SWR,4)}, s42 offen offset:{1024*t}")
    e(f"s_mul_i32 s43, s3, {26*1024}\nv_lshlrev_b32 v14, 4, v1")
    e(f"""s_lshl_b32 s7, s5, 6
    v_add_u32 v{vZ}, s7, v{vX}
    v_and_b32 v15, 12, v{R}
    v_and_b32 v{vW}, 3, v{R}
    v_lshl_add_u32 v15, v15, 1, v{vW}
    s_lshl_b32 s7, s5, 5
    v_add_u32 v15, s7, v15
    v_mul_u32_u24 v15, 80, v15
    s_lshl_b32 s7, s4, 3
    s_add_u32 s7, s7, {L_E1}
    v_add3_u32 v{vE1w}, v15, v13, s7
    s_lshl_b32 s7, s3, 4
    v_add_u32 v15, s7, v{R}
    v_mul_u32_u24 v{vE1r}, 80, v15
    v_add_u32 v{vE1r}, {L_E1}, v{vE1r}
    v_add_u32 v{vE1r}, v{vE1r}, v13
    v_mul_u32_u24 v15, 144, v{R}
    s_lshl_b32 s7, s3, 5
    s_add_u32 s7, s7, {L_E2}
    v_lshl_add_u32 v{vE2w}, v{G}, 3, s7
    v_add_u32 v{vE2w}, v{vE2w}, v15
    s_mul_i32 s7, s4, {16*144}
    s_add_u32 s7, s7, {L_E2}
    v_add3_u32 v{vE2r}, v15, v13, s7""")
    e(f"""s_cmp_ge_u32 s3, 2
    s_cbranch_scc1 K2_nog
    s_lshl_b32 s7, s2, 1
    s_add_u32 s7, s7, s3
    s_lshl_b32 s44, s7, 10
    s_and_b32 s45, s7, 31
    s_lshr_b32 s7, s7, 5
    s_lshl_b32 s7, s7, 5
    s_lshl_b32 s45, s45, 3""")
    swap23(e,A,3,A+1)
    e(f"""v_add_u32 v{A}, s7, v{A}
    v_cvt_f32_u32 v{A}, v{A}
    v_lshl_add_u32 v{A+1}, v2, 2, s45
    v_cmp_eq_u32 vcc, 0, v{A+1}
    v_cvt_f32_u32 v{A+1}, v{A+1}
    v_mul_f32 v{A+2}, {fhex(1/512)}, v{A}
    v_mul_f32 v{A+3}, v{A+2}, v{A+1}
    v_fract_f32 v{A+3}, v{A+3}
    v_mul_f32 v{A+4}, 0.5, v{A}
    v_mov_b32 v{A+5}, {fhex(1/256)}
    v_mov_b32 v{A+6}, {fhex(1/512)}
    v_cndmask_b32 v{A+6}, v{A+5}, v{A+6}, vcc""")
    for q in range(4):
        e(f"v_add_f32 v{T+2*q+1}, 0x3e800000, v{A+3}")
        if q==0: e(f"v_fract_f32 v{A+4}, v{A+4}\nv_cndmask_b32 v{T+1}, v{T+1}, v{A+4}, vcc")
        e(f"v_cos_f32 v{T+2*q}, v{A+3}\nv_cos_f32 v{T+2*q+1}, v{T+2*q+1}")
        if q<3: e(f"v_add_f32 v{A+3}, v{A+3}, v{A+2}")
    e("s_nop 0")
    for j in range(8): e(f"v_mul_f32 v{T+j}, v{A+6 if j<2 else A+5}, v{T+j}")
    for q in range(4): e(f"v_cvt_pk_bf16_f32 v{T+8+q}, v{T+2*q}, v{T+2*q+1}")
    e(f"""buffer_store_dwordx4 {vr(T+8,4)}, v14, {sr(SG,4)}, s44 offen {WT}
    K2_nog:
    s_barrier""")
    ldx()
    order=list(range(12))+list(range(18,22))+list(range(12,18))+list(range(22,26))
    for f in order:
        e(f"s_add_u32 s44, s43, {f*1024}\nbuffer_load_dwordx4 {vr(D64+4*f,4)}, v14, {sr(ST,4)}, s44 offen")
    e("s_barrier\ns_waitcnt vmcnt(10)\nK2_col:")
    def cmul(t,c,s,sign):
        n=" neg_lo:[1,0,0] neg_hi:[1,0,0]"
        for i in (0,2):
            e(f"v_pk_mul_f32 {vr(T+4*t+i,2)}, {vr(A+4*t+i,2)}, {vr(c+i,2)}\nv_pk_mul_f32 {vr(T+8+4*t+i,2)}, {vr(A+8+4*t+i,2)}, {vr(c+i,2)}")
        for i in (0,2):
            e(f"v_pk_fma_f32 {vr(T+4*t+i,2)}, {vr(A+8+4*t+i,2)}, {vr(s+i,2)}, {vr(T+4*t+i,2)}{n if sign>0 else ''}")
            e(f"v_pk_fma_f32 {vr(T+8+4*t+i,2)}, {vr(A+4*t+i,2)}, {vr(s+i,2)}, {vr(T+8+4*t+i,2)}{'' if sign>0 else n}")
    def pack(src):
        for i in range(8): e(f"v_cvt_pk_bf16_f32 v{X+i}, v{src+2*i}, v{src+2*i+1}")
    xr=lambda ks: vr(X+4*ks,4); xi=lambda ks: vr(X+8+4*ks,4)
    ar=lambda t: vr(A+4*t,4); ai=lambda t: vr(A+8+4*t,4)
    for ks in range(2):
        for t in range(2):
            e(f"{MF16} {ar(t)}, {xr(ks)}, {C64(t,ks,0)}, {ar(t) if ks else 0}\n{MF16} {ai(t)}, {xi(ks)}, {C64(t,ks,0)}, {ai(t) if ks else 0}")
        for t in range(2):
            e(f"{MF16} {ar(t)}, {xi(ks)}, {C64(t,ks,1)}, {ar(t)}\n{MF16} {ai(t)}, {xr(ks)}, {C64(t,ks,2)}, {ai(t)}")
    e("s_nop 7")
    ldw()
    for t in range(2): cmul(t,TW1+8*t,TW1+8*t+4,-1)
    pack(T)
    for p in range(2):
        for t in range(2): e(f"ds_write_b64 v{vE1w}, {vr(X+4*p+2*t,2)} offset:{p*5120+t*320}")
    e(f"""s_waitcnt lgkmcnt(0)
    s_barrier
    ds_read_b128 {vr(X,4)}, v{vE1r}
    ds_read_b128 {vr(X+4,4)}, v{vE1r} offset:5120
    s_waitcnt vmcnt(0) lgkmcnt(0)""")
    ur=vr(X,4); ui=vr(X+4,4)
    for t in range(2): e(f"{MF16} {ar(t)}, {C32(t,0)}, {ur}, 0\n{MF16} {ai(t)}, {C32(t,0)}, {ui}, 0")
    for t in range(2): e(f"{MF16} {ar(t)}, {C32(t,1)}, {ui}, {ar(t)}\n{MF16} {ai(t)}, {C32(t,2)}, {ur}, {ai(t)}")
    for i in range(8): e(f"v_lshlrev_b32 v{T+i}, 16, v{WB+i}\nv_and_b32 v{WB+i}, 0xffff0000, v{WB+i}")
    e("s_nop 1")
    for t in range(2):
        P2=[(vr(A+4*t+i,2),vr(A+8+4*t+i,2),vr(T+4*t+i,2),vr(WB+4*t+i,2),vr(T+8+4*t+i,2)) for i in (0,2)]
        for a,b,wr,wi,tm in P2: e(f"v_pk_mul_f32 {tm}, {b}, {wi}\nv_pk_mul_f32 {wi}, {a}, {wi}")
        for a,b,wr,wi,tm in P2:
            e(f"v_pk_fma_f32 {a}, {a}, {wr}, {tm} neg_lo:[0,0,1] neg_hi:[0,0,1]\nv_pk_fma_f32 {b}, {b}, {wr}, {wi}")
    pack(A)
    e("s_nop 1")
    for t in range(2): e(f"{MF16} {ar(t)}, {ur}, {C32(t,0)}, 0\n{MF16} {ai(t)}, {ui}, {C32(t,0)}, 0")
    for t in range(2): e(f"{MF16} {ar(t)}, {ui}, {C32(t,2)}, {ar(t)}\n{MF16} {ai(t)}, {ur}, {C32(t,1)}, {ai(t)}")
    e("s_nop 7")
    for t in range(2): cmul(t,TW2+8*t,TW2+8*t+4,1)
    pack(T)
    for p in range(2):
        for t in range(2): e(f"ds_write_b64 v{vE2w}, {vr(X+4*p+2*t,2)} offset:{p*4608+t*16*144}")
    e("s_waitcnt lgkmcnt(0)\ns_barrier")
    for p in range(2):
        for ks in range(2): e(f"ds_read_b128 {vr(X+8*p+4*ks,4)}, v{vE2r} offset:{p*4608+ks*64}")
    e("s_waitcnt lgkmcnt(0)")
    for ks in range(2):
        for t in range(2):
            e(f"{MF16} {ar(t)}, {C64(t,ks,0)}, {xr(ks)}, {ar(t) if ks else 0}\n{MF16} {ai(t)}, {C64(t,ks,0)}, {xi(ks)}, {ai(t) if ks else 0}")
        for t in range(2):
            e(f"{MF16} {ar(t)}, {C64(t,ks,2)}, {xi(ks)}, {ar(t)}\n{MF16} {ai(t)}, {C64(t,ks,1)}, {xr(ks)}, {ai(t)}")
    e("s_nop 7")
    for i in range(8): e(f"v_cvt_pk_bf16_f32 v{T+i}, v{A+2*i}, v{A+2*i+1}")
    e(f"""buffer_store_dwordx4 {vr(T,4)}, v{vZ}, {sr(SZ,4)}, s40 offen {WT}
    buffer_store_dwordx4 {vr(T+4,4)}, v{vZ}, {sr(SZI,4)}, s41 offen {WT}
    s_cmp_eq_u32 s47, 0
    s_cbranch_scc1 K2_exit
    s_mov_b32 s47, 0
    s_mov_b32 s40, 4096
    s_add_u32 s42, s42, {256*8192}""")
    ldx()
    e("s_waitcnt vmcnt(0)\ns_branch K2_col")
def k2(e):
    header(e,"k2_kernel")
    wg_start(e)
    e(f"""s_cmp_ge_u32 s2, 256
    s_cbranch_scc1 K2_exit
    s_load_dwordx2 s[78:79], s[0:1], 80
    v_lshrrev_b32 v4, 6, v0
    v_and_b32 v1, 63, v0
    v_readfirstlane_b32 s3, v4
    v_lshrrev_b32 v2, 5, v1
    v_and_b32 v3, 31, v1
    v_cmp_gt_u32 s[48:49], 16, v3
    s_waitcnt lgkmcnt(0)
    s_cmp_ge_u32 s3, 8
    s_cbranch_scc1 K2_fft""")
    stamp_init(e)
    attn(e)
    e("K2_fft:")
    fft(e)
    e("K2_exit:\ns_endpgm")
```
